```python
import torch

def _softmax(x, axis=-1):
    return torch.softmax(x, dim=axis)

def _gelu(x):
    return torch.nn.functional.gelu(x, approximate='tanh')

def _silu(x):
    return torch.nn.functional.silu(x)

def _sigmoid(x):
    return torch.sigmoid(x)

def _layernorm(x, axis=-1, eps=1e-05):
    m = x.mean(dim=axis, keepdim=True)
    v = x.var(dim=axis, keepdim=True, unbiased=False)
    return (x - m) / torch.sqrt(v + eps)

def _scatter_add(tgt, idx, src, axis=0):
    return tgt.clone().index_add_(axis, idx, src)

def _segment_sum(src, seg, n):
    out = torch.zeros((n,) + src.shape[1:], dtype=src.dtype)
    return out.index_add_(0, seg, src)

def _pad(x, pw):
    flat = tuple((v for pair in reversed(pw) for v in pair))
    return torch.nn.functional.pad(x, flat)
kernel_name = 'sequential_preLN__memory_aug_recurrent_mem_tr__swiglu_ffn__prompt'

def setup_inputs():

    _w = lambda a: (lambda t: t.to(torch.bfloat16) if t.is_floating_point() else t)(torch.as_tensor(a))

    def _A_setup():
        B, S, Dm = (1, 2048, 640)
        H, Dh = (32, 192)
        M, seg = (8, 32)
        seg = min(seg, S)
        S = S // seg * seg
        return {'x': _w((lambda *s: torch.randn(*s, dtype=torch.bfloat16) * 0.05)(B, S, Dm)), 'mem0': _w((lambda *s: torch.randn(*s, dtype=torch.bfloat16) * 0.2)(B, M, Dm)), 'Wq': _w((lambda *s: torch.randn(*s, dtype=torch.bfloat16) * 1.6)(Dm, H, Dh) * Dm ** (-0.5)), 'Wk': _w((lambda *s: torch.randn(*s, dtype=torch.bfloat16) * 1.6)(Dm, H, Dh) * Dm ** (-0.5)), 'Wv': _w((lambda *s: torch.randn(*s, dtype=torch.bfloat16) * 0.2)(Dm, H, Dh) * Dm ** (-0.5)), 'Wo': _w((lambda *s: torch.randn(*s, dtype=torch.bfloat16) * 0.2)(H, Dh, Dm) * (H * Dh) ** (-0.5)), 'seg_len': seg}
    _A_in = _A_setup()

    def _B_setup():
        B, S, D, F = (1, 2048, 640, 1536)
        return {'x': _w((lambda *s: torch.randn(*s, dtype=torch.bfloat16) * 0.05)(B, S, D)), 'w_gate': _w((lambda *s: torch.randn(*s, dtype=torch.bfloat16) * 0.05)(D, F)), 'w_up': _w((lambda *s: torch.randn(*s, dtype=torch.bfloat16) * 0.05)(D, F)), 'w_down': _w((lambda *s: torch.randn(*s, dtype=torch.bfloat16) * 0.05)(F, D))}
    _B_in = _B_setup()
    return {'A_x': _A_in['x'], 'A_mem0': _A_in['mem0'], 'A_Wq': _A_in['Wq'], 'A_Wk': _A_in['Wk'], 'A_Wv': _A_in['Wv'], 'A_Wo': _A_in['Wo'], 'A_seg_len': _A_in['seg_len'], 'B_x': _B_in['x'], 'B_w_gate': _B_in['w_gate'], 'B_w_up': _B_in['w_up'], 'B_w_down': _B_in['w_down']}

def reference(A_x, A_mem0, A_Wq, A_Wk, A_Wv, A_Wo, A_seg_len, B_x, B_w_gate, B_w_up, B_w_down):

    def _A_ref(x, mem0, Wq, Wk, Wv, Wo, seg_len):
        B, S, Dm = x.shape
        H, Dh = (Wq.shape[1], Wq.shape[2])
        M = mem0.shape[1]
        scale = Dh ** (-0.5)
        n_seg = S // seg_len
        L = M + seg_len
        idx = torch.arange(L)
        mask = (idx[:, None] < M) | (idx[:, None] >= idx[None, :])
        mem = mem0
        outs = []
        for s in range(n_seg):
            xs = x[:, s * seg_len:(s + 1) * seg_len, :].clone()
            h = torch.concatenate([mem, xs], axis=1)
            q = torch.einsum('btd,dhe->bhte', h, Wq)
            k = torch.einsum('btd,dhe->bhte', h, Wk)
            v = torch.einsum('btd,dhe->bhte', h, Wv)
            scores = torch.einsum('bhqe,bhke->bhqk', q, k) * scale
            scores = torch.where(mask[None, None], scores, -1000000000.0)
            p = _softmax(scores, axis=-1)
            o = torch.einsum('bhqk,bhke->bhqe', p, v)
            o = torch.einsum('bhte,hed->btd', o, Wo)
            mem = o[:, :M, :].clone()
            outs.append(o[:, M:, :])
        return torch.concatenate(outs, axis=1)

    def _B_ref(x, w_gate, w_up, w_down):
        g = _silu(x @ w_gate)
        u = x @ w_up
        return g * u @ w_down
    x = A_x
    h = x + _A_ref(_layernorm(x, axis=-1), A_mem0, A_Wq, A_Wk, A_Wv, A_Wo, A_seg_len)
    h2 = h + _B_ref(_layernorm(h, axis=-1), B_w_gate, B_w_up, B_w_down)
    return h2
```

```python
class Asm:
    def __init__(self):
        self.lines = []
        self._uid = 0
    def __call__(self, s=""):
        for ln in s.split("\n"):
            self.lines.append("    " + ln.strip() if ln.strip() and not ln.strip().endswith(":") else ln.strip())
    def label(self, name):
        self.lines.append(name + ":")
    _gid = [0]
    def uid(self, base="L"):
        Asm._gid[0] += 1
        return "%s_%d" % (base, Asm._gid[0])
    def comment(self, s):
        self.lines.append("    ; " + s)
    def text(self):
        return "\n".join(self.lines) + "\n"

def vr(a, n=1):
    return "v%d" % a if n == 1 else "v[%d:%d]" % (a, a + n - 1)
def ar(a, n=1):
    return "a%d" % a if n == 1 else "a[%d:%d]" % (a, a + n - 1)
def sr(a, n=1):
    return "s%d" % a if n == 1 else "s[%d:%d]" % (a, a + n - 1)

def kernel_head(name):
    return (".globl %s\n.p2align 8\n.type %s,@function\n%s:\n" % (name, name, name))

def kernel_desc(name, vgpr, sgpr, accum, kernarg=112):
    return (""".amdhsa_kernel %s
  .amdhsa_next_free_vgpr %d
  .amdhsa_next_free_sgpr %d
  .amdhsa_accum_offset %d
  .amdhsa_group_segment_fixed_size 0
  .amdhsa_kernarg_size %d
  .amdhsa_user_sgpr_count 2
  .amdhsa_user_sgpr_kernarg_segment_ptr 1
  .amdhsa_system_sgpr_workgroup_id_x 1
  .amdhsa_float_denorm_mode_32 3
.end_amdhsa_kernel
""" % (name, vgpr, sgpr, accum, kernarg))

def module(header_comments, kernels):
    out = []
    for h in header_comments:
        out.append("; " + h)
    out.append('.amdgcn_target "amdgcn-amd-amdhsa--gfx950"')
    out.append(".text")
    for (name, body, vgpr, sgpr, accum) in kernels:
        out.append(kernel_head(name) + body)
    out.append('.section .rodata,"a"')
    for (name, body, vgpr, sgpr, accum) in kernels:
        out.append(".p2align 6")
        out.append(kernel_desc(name, vgpr, sgpr, accum))
    return "\n".join(out) + "\n"
```

```python
from kcommon import *
M_ILO = "0x00ff00ff00ff00ff"

class LdsQ:
    def __init__(self, a): self.a = a; self.q = []
    def issue(self, tag, text): self.a.i(text); self.q.append(tag)
    def wait(self, tags):
        idx = [i for i, t in enumerate(self.q) if t in tags]
        if not idx: return
        last = max(idx)
        n = len(self.q) - 1 - last
        self.a.waitl(min(n, 15)); self.q = self.q[last + 1:] if n <= 15 else self.q[len(self.q) - 15:]

def set_exec(a, lo, hi):
    a.i("s_mov_b32 exec_lo, 0x%x", lo); a.i("s_mov_b32 exec_hi, 0x%x", hi)
def full_exec(a): a.i("s_mov_b64 exec, -1")

def make_consts(a, vidx, vid):
    a.i("v_and_b32 v3, 15, v1"); a.i("v_lshrrev_b32 v4, 4, v1")
    a.i("v_mov_b32 v%d, 0x4444", vidx); a.i("v_mov_b32 v5, 0xeeee")
    a.i("v_cmp_le_u32 vcc, 8, v3"); a.i("v_cndmask_b32 v%d, v%d, v5, vcc", vidx, vidx)
    a.i("v_lshlrev_b32 v5, 2, v4"); a.i("v_sub_u32 v5, v3, v5")
    a.i("v_mov_b32 v%d, 0", vid); a.i("v_mov_b32 v%d, 0", vid + 1)
    for k, (r, val) in enumerate(((vid, 0x3f80), (vid, 0x3f800000), (vid + 1, 0x3f80), (vid + 1, 0x3f800000))):
        a.i("v_mov_b32 v6, 0x%x", val); a.i("v_cmp_eq_u32 vcc, %d, v5", k); a.i("v_cndmask_b32 v%d, v%d, v6, vcc", r, r)

def poison_any(a, regs, vt):
    regs = list(regs)
    a.i("v_max3_u32 v%d, v%d, v%d, v%d", vt, regs[0], regs[1], regs[2]); rest = regs[3:]
    while len(rest) >= 2:
        a.i("v_max3_u32 v%d, v%d, v%d, v%d", vt, vt, rest[0], rest[1]); rest = rest[2:]
    if rest: a.i("v_max_u32 v%d, v%d, v%d", vt, vt, rest[0])
    a.i("v_cmp_eq_u32 vcc, -1, v%d", vt)
def poll_tail(a, lab):
    done = a.uid("Lpd")
    a.i("s_cbranch_vccz %s", done)
    a.i("s_sub_u32 s%d, s%d, 1", S_BUDGET, S_BUDGET); a.i("s_cbranch_scc1 L_abort")
    a.i("s_branch %s", lab)
    a.label(done)
def guard(a, regs):
    for r in regs: a.i("v_min_u32 v%d, -2, v%d", r, r)
def store_mode(a, text):
    l1 = a.uid("Lsm"); l2 = a.uid("Lsm")
    a.i("s_cmp_lg_u32 s23, 0"); a.i("s_cbranch_scc1 %s", l1)
    a.i(text); a.i("s_branch %s", l2)
    a.label(l1); a.i(text + " sc1"); a.label(l2)
def rowmax(a, v, t, op):
    a.i("v_mov_b32 v%d, v%d", t, v); a.i("v_permlane16_swap_b32 v%d, v%d", v, t); a.i("%s v%d, v%d, v%d", op, v, v, t)
    a.i("v_mov_b32 v%d, v%d", t, v); a.i("v_permlane32_swap_b32 v%d, v%d", v, t); a.i("%s v%d, v%d, v%d", op, v, v, t)
def check_flag_cached(a, vflag, vzero_or_addr, saddr, need_expr_s, lanes_all=True):
    ok = a.uid("Lck")
    a.i("v_cmp_gt_u32 vcc, %s, v%d", need_expr_s, vflag)
    a.i("s_cbranch_vccz %s", ok)
    wait_ge(a, vflag, vzero_or_addr, saddr, need_expr_s, sleep=2)
    a.label(ok)

QW_STR = 800; QW_BUF = 32 * QW_STR; Q_LW = 0; Q_WORK = 98304
def qk_block(n, kk):
    if n == 5: return ("lds", kk if kk <= 8 else 10)
    if n == 4 and kk >= 8: return ("lds", 9 if kk == 8 else 11)
    b = n * 10 + kk if n < 4 else 40 + kk
    return ("a", 8 * b) if b < 32 else ("v", 128 + 8 * (b - 32))
def breg(loc, off=0, n=8):
    return ar(loc[1] + off, n) if loc[0] == "a" else vr(loc[1] + off, n)

def qk_load_weights(a):
    G, Ld, TB, LW, STG, TMP = 108, 111, 114, 115, 8, 80
    for j in range(3):
        a.i("v_add_u32 v3, %d, v0", 256 * j)
        a.divmod_const(4, 5, 3, 24, 768)
        a.vmul(G + j, 12288, 4); a.i("v_lshl_add_u32 v%d, v5, 4, v%d", G + j, G + j)
        a.vmul(Ld + j, QW_STR, 4); a.i("v_lshl_add_u32 v%d, v5, 4, v%d", Ld + j, Ld + j)
        a.i("v_add_u32 v%d, %d, v%d", Ld + j, Q_WORK, Ld + j)
    a.i("v_and_b32 v3, 15, v1"); a.i("v_lshrrev_b32 v4, 4, v1")
    a.i("v_lshrrev_b32 v5, 2, v3"); a.i("v_lshl_add_u32 v5, v4, 2, v5")
    a.vmul(TB, QW_STR, 5); a.i("v_and_b32 v3, 3, v3"); a.i("v_lshl_add_u32 v%d, v3, 3, v%d", TB, TB)
    a.i("s_mul_i32 s26, s20, 96"); a.i("s_add_u32 s26, s26, %d", Q_WORK); a.i("v_add_u32 v%d, s26, v%d", TB, TB)
    a.i("s_mul_i32 s26, s20, 24576"); a.i("v_add_u32 v%d, s26, v2", LW)
    a.i("s_mul_i32 s25, s21, 384")
    def issue(c):
        r = STG + 24 * (c % 3)
        for j in range(6):
            a.i("buffer_load_dwordx4 v[%d:%d], v%d, s[%d:%d], s25 offen", r + 4 * j, r + 4 * j + 3, G + j % 3, 8 if j < 3 else 12, 11 if j < 3 else 15)
        a.i("s_add_u32 s25, s25, 0x%x", 32 * 12288)
    for c in range(3): issue(c)
    for c in range(20):
        r = STG + 24 * (c % 3); b = (c & 1) * QW_BUF; kk = c >> 1; th = c & 1
        a.waitv(min(12, 6 * (19 - c)))
        for j in range(6):
            a.i("ds_write_b128 v%d, v[%d:%d] offset:%d", Ld + j % 3, r + 4 * j, r + 4 * j + 3, b + (384 if j >= 3 else 0))
        a.waitl(0)
        if c + 3 < 20: issue(c + 3)
        a.barrier()
        pend = []
        for n in range(6):
            loc = qk_block(n, kk)
            for tt in range(2):
                off = b + 16 * tt * QW_STR + (384 if n >= 3 else 0) + 32 * (n % 3)
                if loc[0] == "lds":
                    d = TMP + 4 * len(pend) + 2 * tt
                    a.i("ds_read_b64_tr_b16 v[%d:%d], v%d offset:%d", d, d + 1, TB, off)
                else:
                    a.i("ds_read_b64_tr_b16 %s, v%d offset:%d", breg(loc, 4 * th + 2 * tt, 2), TB, off)
            if loc[0] == "lds": pend.append(loc[1])
        a.waitl(0)
        for k, j in enumerate(pend):
            a.i("ds_write_b128 v%d, v[%d:%d] offset:%d", LW, TMP + 4 * k, TMP + 4 * k + 3, j * 2048 + th * 1024)
    a.waitl(0)
    a.barrier()

def role_qk(a):
    stamp(a, 0)
    qk_load_weights(a)
    stamp(a, 1)
    AF, ACC, KX_, RINGW, PL, IDV, IDX = 8, 48, 72, 84, 108, 118, 120
    VA4, VA2, VLW, VZ, VFK, VSP, VPX, VPM = 121, 122, 123, 124, 125, 126, 127, 7
    make_consts(a, IDX, IDV)
    a.i("s_mul_i32 s26, s20, 2560")
    a.i("v_add_u32 v%d, s26, v2", VA4)
    a.i("v_lshlrev_b32 v3, 3, v1"); a.i("v_add_u32 v3, s26, v3"); a.i("v_add_u32 v%d, 2048, v3", VA2)
    a.i("s_mul_i32 s26, s20, 24576"); a.i("v_add_u32 v%d, s26, v2", VLW)
    a.i("v_mov_b32 v%d, 0", VZ); a.i("v_mov_b32 v%d, 0", VFK)
    a.i("s_mul_i32 s26, s20, 3072"); a.i("s_add_u32 s26, s26, %d", Q_WORK + 20480); a.i("v_add_u32 v%d, s26, v2", VSP)
    a.i("v_and_b32 v3, 15, v1"); a.i("v_lshrrev_b32 v4, 4, v1")
    a.i("v_and_b32 v5, 1, v4"); a.i("v_lshlrev_b32 v5, 8, v5"); a.i("v_lshrrev_b32 v6, 1, v4"); a.i("v_lshl_add_u32 v5, v6, 7, v5")
    a.i("v_lshl_add_u32 v%d, v3, 4, v5", VPX)
    a.i("v_and_b32 v5, 1, v4"); a.i("v_lshlrev_b32 v5, 6, v5"); a.i("v_lshl_add_u32 v5, v3, 3, v5"); a.i("v_add_u32 v%d, 512, v5", VPM)
    a.i("s_mul_i32 s27, s22, 10240"); a.i("s_add_u32 s27, s27, 0x%x", L.MEM)
    a.i("s_mul_i32 s28, s21, 12288"); a.i("s_mul_i32 s26, s20, 3072"); a.i("s_add_u32 s28, s28, s26"); a.i("s_add_u32 s28, s28, 0x%x", L.KX)
    a.i("s_mul_i32 s29, s21, 6144"); a.i("s_mul_i32 s26, s20, 1536"); a.i("s_add_u32 s29, s29, s26"); a.i("s_add_u32 s29, s29, 0x%x", L.KM)
    a.i("s_mul_i32 s30, s21, 640"); a.i("s_add_u32 s30, s30, 0x%x", L.PCH)
    a.i("s_lshl_b32 s26, s21, 7"); a.i("s_add_u32 s31, s26, %d", L.F_PROGK); a.i("s_add_u32 s33, s26, %d", L.F_PROGKM)
    a.i("s_mov_b32 s40, 0x%x", 0x3dd53b95)
    def key_prefetch(first=False):
        if first: a.i("s_mov_b32 s35, 0")
        else: a.i("s_add_u32 s35, s24, 1"); a.i("s_min_u32 s35, s35, 63")
        a.i("s_add_u32 s37, s35, 1")
        check_flag_cached(a, VFK, VZ, "s31", "s37")
        a.i("s_mul_i32 s36, s35, %d", L.KX_S); a.i("s_add_u32 s36, s36, s28")
        for j in range(3):
            a.i("buffer_load_dwordx4 v[%d:%d], v2, s[4:7], s36 offen offset:%d sc1", KX_ + 4 * j, KX_ + 4 * j + 3, 1024 * j)
        a.i("buffer_load_dword v%d, v%d, s[4:7], s31 offen sc1", VFK, VZ)
    key_prefetch(first=True)
    a.i("s_mov_b32 s24, 0")
    a.label("Lq_loop")
    for r in range(24): a.i("v_mov_b32 v%d, 0", ACC + r)
    a.i("s_mul_i32 s34, s24, %d", L.MEM_S); a.i("s_add_u32 s34, s34, s27")
    a.i("s_and_b32 s26, s24, 1"); a.i("s_mul_i32 s26, s26, 10240"); a.i("s_add_u32 s26, s26, %d", Q_WORK)
    a.i("v_add_u32 v3, s26, v%d", VA4); a.i("v_add_u32 v4, s26, v%d", VA2); a.i("v_add_u32 v5, s26, v2")
    a.label("Lq_poll")
    a.i("buffer_load_dwordx4 v[%d:%d], v%d, s[4:7], s34 offen sc1", PL, PL + 3, VA4)
    a.i("buffer_load_dwordx4 v[%d:%d], v%d, s[4:7], s34 offen offset:1024 sc1", PL + 4, PL + 7, VA4)
    a.i("buffer_load_dwordx2 v[%d:%d], v%d, s[4:7], s34 offen sc1", PL + 8, PL + 9, VA2)
    a.waitv(0)
    poison_any(a, range(PL, PL + 10), 6)
    poll_tail(a, "Lq_poll")
    a.i("ds_write_b128 v3, v[%d:%d]", PL, PL + 3)
    a.i("ds_write_b128 v3, v[%d:%d] offset:1024", PL + 4, PL + 7)
    a.i("ds_write_b64 v4, v[%d:%d]", PL + 8, PL + 9)
    tstamp(a, 0)
    a.waitl(0)
    a.barrier()
    tstamp(a, 1)
    q = LdsQ(a)
    def rdA(kk): q.issue("A%d" % kk, "ds_read_b128 v[%d:%d], v5 offset:%d" % (AF + 4 * kk, AF + 4 * kk + 3, kk * 1024))
    def rdW(j):
        r = RINGW + 8 * (j % 3)
        q.issue("W%d" % j, "ds_read_b128 v[%d:%d], v%d offset:%d" % (r, r + 3, VLW, j * 2048))
        q.issue("W%d" % j, "ds_read_b128 v[%d:%d], v%d offset:%d" % (r + 4, r + 7, VLW, j * 2048 + 1024))
    rdA(0); rdA(1); rdW(0); rdA(2); rdW(1); rdA(3); rdW(2); rdA(4); rdA(5)
    nextW = 3; nextA = 6
    for kk in range(10):
        order = [0, 1, 2, 3, 4, 5] if kk < 8 else [0, 1, 2, 3, 5, 4]
        q.wait(["A%d" % kk])
        for n in order:
            loc = qk_block(n, kk)
            if loc[0] == "lds":
                j = loc[1]; q.wait(["W%d" % j]); B = vr(RINGW + 8 * (j % 3), 8)
            else: B = breg(loc)
            a.smf(vr(ACC + 4 * n, 4), vr(AF + 4 * kk, 4), B, "v%d" % IDX)
            if loc[0] == "lds" and nextW < 12: rdW(nextW); nextW += 1
        if nextA < 10: rdA(nextA); nextA += 1
    X, AT, D2, F = 8, 20, 28, 40
    tstamp(a, 2)
    for t in range(3):
        for r in range(4): a.i("v_permlane32_swap_b32 v%d, v%d", ACC + 4 * t + r, ACC + 4 * (3 + t) + r)
        for r in range(4): a.i("v_add_f32 v%d, v%d, v%d", X + 4 * t + r, ACC + 4 * t + r, ACC + 4 * (3 + t) + r)
        a.cvtpk(AT + 2 * t, X + 4 * t, X + 4 * t + 1); a.cvtpk(AT + 2 * t + 1, X + 4 * t + 2, X + 4 * t + 3)
    for t in range(3): a.mfma16(vr(D2 + 4 * t, 4), vr(AT + 2 * t, 2), vr(IDV, 2), "0")
    for t in range(3):
        a.cvtpk(F + 2 * t, D2 + 4 * t, D2 + 4 * t + 1); a.cvtpk(F + 2 * t + 1, D2 + 4 * t + 2, D2 + 4 * t + 3)
    a.i("s_mul_i32 s36, s24, %d", L.KM_S); a.i("s_add_u32 s36, s36, s29")
    T = 8
    a.i("s_cmp_eq_u32 s24, 63"); a.i("s_cbranch_scc1 Lq_last")
    a.mfma32(vr(T, 4), vr(F, 4), vr(F, 4), "0")
    a.mfma32(vr(T + 4, 4), vr(KX_, 4), vr(F, 4), "0")
    a.mfma32(vr(T + 8, 4), vr(KX_ + 4, 4), vr(F, 4), "0")
    a.mfma16(vr(T, 4), vr(F + 4, 2), vr(F + 4, 2))
    a.mfma16(vr(T + 4, 4), vr(KX_ + 8, 2), vr(F + 4, 2))
    a.mfma16(vr(T + 8, 4), vr(KX_ + 10, 2), vr(F + 4, 2))
    def pub_km():
        set_exec(a, 0xff00ff00, 0xff00ff00)
        a.i("buffer_store_dwordx4 v[%d:%d], v2, s[4:7], s36 offen sc1", F, F + 3)
        a.i("v_lshlrev_b32 v3, 3, v1")
        a.i("buffer_store_dwordx2 v[%d:%d], v3, s[4:7], s36 offen offset:1024 sc1", F + 4, F + 5)
        full_exec(a)
    for t in range(3): a.i("ds_write_b128 v%d, v[%d:%d] offset:%d", VSP, T + 4 * t, T + 4 * t + 3, 1024 * t)
    pub_km()
    tstamp(a, 3)
    a.waitl(0)
    a.barrier()
    tstamp(a, 4)
    a.i("s_cmp_lg_u32 s20, 0"); a.i("s_cbranch_scc1 Lq_next")
    R = 20
    for w in range(4):
        for t in range(3):
            r = (T if w == 0 else R + 12 * (w - 1)) + 4 * t
            a.i("ds_read_b128 v[%d:%d], v%d offset:%d", r, r + 3, VSP, w * 3072 + t * 1024)
    a.waitl(6)
    for k in range(12): a.i("v_add_f32 v%d, v%d, v%d", T + k, T + k, R + k)
    a.waitl(0)
    for k in range(12): a.i("v_add_f32 v%d, v%d, v%d", R + 12 + k, R + 12 + k, R + 24 + k)
    for k in range(12): a.i("v_add_f32 v%d, v%d, v%d", T + k, T + k, R + 12 + k)
    a.i("v_mov_b32 v3, 0xff800000")
    set_exec(a, 0xffffffff, 0)
    for k in range(4): a.i("v_mov_b32 v%d, v3", T + k)
    full_exec(a)
    M, TT = 60, 61
    a.i("v_max3_f32 v%d, v%d, v%d, v%d", M, T, T + 1, T + 2)
    for k in range(3, 11, 2): a.i("v_max3_f32 v%d, v%d, v%d, v%d", M, M, T + k, T + k + 1)
    a.i("v_max_f32 v%d, v%d, v%d", M, M, T + 11)
    rowmax(a, M, TT, "v_max_f32")
    a.i("v_mul_f32 v%d, s40, v%d", M, M)
    for k in range(12): a.i("v_fma_f32 v%d, v%d, s40, -v%d", T + k, T + k, M)
    for k in range(12): a.i("v_exp_f32 v%d, v%d", T + k, T + k)
    a.i("v_add_f32 v%d, v%d, v%d", M, T, T + 1); a.i("v_add_f32 v%d, v%d, v%d", TT, T + 2, T + 3)
    for k in range(4, 12, 2):
        a.i("v_add_f32 v%d, v%d, v%d", M, M, T + k); a.i("v_add_f32 v%d, v%d, v%d", TT, TT, T + k + 1)
    a.i("v_add_f32 v%d, v%d, v%d", M, M, TT)
    rowmax(a, M, TT, "v_add_f32")
    a.i("v_rcp_f32 v%d, v%d", M, M)
    for k in range(12): a.i("v_mul_f32 v%d, v%d, v%d", T + k, T + k, M)
    PXR, PMR = 24, 28
    a.cvtpk(PXR, T + 4, T + 5); a.cvtpk(PXR + 1, T + 6, T + 7); a.cvtpk(PXR + 2, T + 8, T + 9); a.cvtpk(PXR + 3, T + 10, T + 11)
    a.cvtpk(PMR, T, T + 1); a.cvtpk(PMR + 1, T + 2, T + 3)
    a.i("v_permlane16_swap_b32 v%d, v%d", PXR, PXR + 2); a.i("v_permlane16_swap_b32 v%d, v%d", PXR + 1, PXR + 3)
    guard(a, [PXR, PXR + 1, PXR + 2, PXR + 3, PMR, PMR + 1])
    a.i("s_mul_i32 s36, s24, %d", L.PCH_S); a.i("s_add_u32 s36, s36, s30")
    set_exec(a, 0x00ff00ff, 0x00ff00ff)
    store_mode(a, "buffer_store_dwordx4 v[%d:%d], v%d, s[4:7], s36 offen" % (PXR, PXR + 3, VPX))
    set_exec(a, 0, 0x00ff00ff)
    store_mode(a, "buffer_store_dwordx2 v[%d:%d], v%d, s[4:7], s36 offen" % (PMR, PMR + 1, VPM))
    full_exec(a)
    tstamp(a, 5)
    a.label("Lq_next")
    lab = a.uid("Lq_nf")
    a.i("s_cmp_lg_u32 s20, 3"); a.i("s_cbranch_scc1 %s", lab)
    a.i("v_mov_b32 v6, s24"); a.i("s_mov_b64 exec, 1")
    a.i("buffer_store_dword v6, v%d, s[4:7], s33 offen sc1", VZ); full_exec(a)
    a.label(lab)
    key_prefetch()
    tflush(a)
    a.i("s_add_u32 s24, s24, 1"); a.i("s_branch Lq_loop")
    a.label("Lq_last")
    pub_km()
    a.waitv(0); a.barrier()
    a.i("s_cmp_lg_u32 s20, 3"); a.i("s_cbranch_scc1 L_exit")
    a.i("v_mov_b32 v6, 64"); a.i("s_mov_b64 exec, 1")
    a.i("buffer_store_dword v6, v%d, s[4:7], s33 offen sc1", VZ)
    stamp_any(a, 2)
    a.i("s_branch L_exit")

def stamp_any(a, slot):
    import kcommon
    if not kcommon.PROFILE: return
    a.i("s_memrealtime s[98:99]"); a.i("s_waitcnt lgkmcnt(0)")
    a.i("v_mov_b32 v4, s98"); a.i("s_lshl_b32 s98, s2, 8"); a.i("s_add_u32 s98, s98, 0x%x", PROF + 4 * slot)
    a.i("v_mov_b32 v5, 0")
    a.i("buffer_store_dword v4, v5, s[4:7], s98 offen")
    a.i("s_memtime s[96:97]"); a.i("s_waitcnt lgkmcnt(0)")
    a.i("v_mov_b32 v4, s96")
    a.i("buffer_store_dword v4, v5, s[4:7], s98 offen offset:128")


B_STG = 0
B_MEM = 65536
B_RED = 65536 + 20480
PRE_GATHER = 11
def b_block(hh, ct, kk):
    b = kk * 4 + hh * 2 + ct
    return ("a", 8 * b) if b < 32 else ("v", 192 + 8 * (b - 32))

def b_load(a):
    a.i("s_mul_i32 s26, s22, 20"); a.i("s_add_u32 s26, s26, s21"); a.i("s_lshl_b32 s26, s26, 2"); a.i("s_add_u32 s26, s26, s20")
    a.i("s_mul_i32 s26, s26, %d", L.BB_W); a.i("s_add_u32 s26, s26, 0x%x", L.BB)
    for b in range(40):
        loc = ("a", 8 * b) if b < 32 else ("v", 192 + 8 * (b - 32))
        for hf in range(2):
            a.i("buffer_load_dwordx4 %s, v2, s[4:7], s26 offen offset:%d", breg(loc, 4 * hf, 4), (b & 1) * 2048 + hf * 1024)
        if b & 1: a.i("s_add_u32 s26, s26, 4096")
        if b % 8 == 7 and b < 39: a.waitv(32)
    a.waitv(0)

def role_b(a):
    stamp(a, 0)
    b_load(a)
    stamp(a, 1)
    AF, ZA, UU, ZB, PXA, PMA, OUT, PL, GG, OWN, ZP = 8, 48, 64, 80, 88, 92, 96, 104, 120, 132, 136
    IDX, IDV = 148, 150
    VMA, VMB, VPX, VPM, VZ, VFU, VFUA, VRED, VPART, VMO, VZM, VT1, VT2, VG1, VG2, VG3 = range(152, 168)
    make_consts(a, IDX, IDV)
    a.i("v_mov_b32 v%d, 0", VZ); a.i("v_mov_b32 v%d, 0", VFU)
    for r in range(4): a.i("v_mov_b32 v%d, 0", PMA + r)
    a.i("s_cmp_eq_u32 s20, 2"); a.i("s_cselect_b32 s26, 4096, 0"); a.i("s_cmp_eq_u32 s20, 3"); a.i("s_cselect_b32 s26, 7168, s26")
    a.i("v_add_u32 v%d, s26, v2", VMA)
    a.i("s_cmp_eq_u32 s20, 0"); a.i("s_cselect_b32 s28, 3072, s26"); a.i("v_add_u32 v%d, s28, v2", VMB)
    a.i("s_lshr_b32 s26, s26, 7")
    a.i("v_min_u32 v3, 31, v1"); a.i("v_add_u32 v3, s26, v3"); a.i("v_min_u32 v3, 79, v3"); a.i("v_lshlrev_b32 v%d, 7, v3", VT1)
    a.i("s_lshl_b32 s27, s22, 3"); a.i("s_lshl_b32 s26, s20, 1"); a.i("s_add_u32 s27, s27, s26")
    a.i("v_and_b32 v3, 15, v1"); a.i("v_lshrrev_b32 v4, 4, v1")
    a.i("v_lshrrev_b32 v5, 1, v4"); a.vmul(5, 640, 5)
    a.i("v_and_b32 v6, 1, v4"); a.i("v_lshl_add_u32 v5, v6, 7, v5")
    a.i("v_lshrrev_b32 v6, 3, v3"); a.i("v_lshl_add_u32 v5, v6, 8, v5")
    a.i("v_and_b32 v6, 7, v3"); a.i("v_lshl_add_u32 v%d, v6, 4, v5", VPX)
    a.i("v_and_b32 v5, 1, v4"); a.i("v_lshlrev_b32 v5, 6, v5"); a.i("v_lshl_add_u32 v5, v6, 3, v5"); a.i("v_add_u32 v%d, 512, v5", VPM)
    a.i("v_min_u32 v5, 9, v1"); a.i("v_lshlrev_b32 v%d, 7, v5", VT2)
    a.i("s_mul_i32 s30, s27, 640"); a.i("s_add_u32 s30, s30, 0x%x", L.PCH)
    a.i("v_and_b32 v5, 1, v1"); a.i("v_add_u32 v5, s27, v5"); a.i("v_lshlrev_b32 v5, 7, v5"); a.i("v_add_u32 v%d, %d, v5", VFUA, L.F_PROGU)
    a.i("s_mul_i32 s29, s27, 40960"); a.i("s_lshl_b32 s26, s21, 11"); a.i("s_add_u32 s29, s29, s26"); a.i("s_add_u32 s29, s29, 0x%x", L.UB)
    a.i("s_lshl_b32 s26, s20, 10"); a.i("s_add_u32 s26, s26, %d", B_RED); a.i("v_add_u32 v%d, s26, v2", VRED)
    a.i("s_lshl_b32 s26, s22, 10"); a.i("v_add_u32 v%d, s26, v2", VPART)
    for k, r in ((1, VG1), (2, VG2), (3, VG3)):
        a.i("s_xor_b32 s26, s22, %d", k); a.i("s_lshl_b32 s26, s26, 10"); a.i("v_add_u32 v%d, s26, v2", r)
    a.i("s_lshl_b32 s31, s21, 12"); a.i("s_add_u32 s31, s31, 0x%x", L.PART)
    a.i("v_lshlrev_b32 v5, 7, v4"); a.i("v_and_b32 v6, 7, v3"); a.i("v_lshl_add_u32 v5, v6, 4, v5")
    a.i("s_lshl_b32 s26, s21, 9"); a.i("v_add_u32 v%d, s26, v5", VMO)
    a.i("s_mul_i32 s33, s22, 10240"); a.i("s_add_u32 s33, s33, 0x%x", L.MEM)
    a.i("v_lshrrev_b32 v5, 1, v4"); a.i("v_lshlrev_b32 v5, 10, v5"); a.i("v_and_b32 v6, 1, v4"); a.i("v_lshl_add_u32 v5, v6, 8, v5")
    a.i("v_lshl_add_u32 v5, v3, 4, v5")
    a.i("s_lshr_b32 s26, s27, 2"); a.i("s_mul_i32 s26, s26, 40960"); a.i("s_lshl_b32 s28, s21, 11"); a.i("s_add_u32 s26, s26, s28")
    a.i("s_and_b32 s28, s20, 1"); a.i("s_lshl_b32 s28, s28, 9"); a.i("s_add_u32 s26, s26, s28"); a.i("s_add_u32 s26, s26, 0x%x", L.ZM)
    a.i("v_add_u32 v%d, s26, v5", VZM)
    a.i("s_mul_i32 s26, s22, 20"); a.i("s_add_u32 s26, s26, s21"); a.i("s_lshl_b32 s26, s26, 7"); a.i("s_add_u32 s41, s26, %d", L.F_PROGZ)
    def u_prefetch(first=False):
        if first: a.i("s_mov_b32 s35, 0")
        else: a.i("s_add_u32 s35, s24, 1"); a.i("s_min_u32 s35, s35, 63")
        a.i("s_add_u32 s37, s35, 1")
        check_flag_cached(a, VFU, VFUA, "0", "s37")
        a.i("s_mul_i32 s36, s35, %d", L.UB_S); a.i("s_add_u32 s36, s36, s29"); a.i("s_add_u32 s37, s36, 40960")
        for ct in range(2):
            a.i("buffer_load_dwordx4 v[%d:%d], v2, s[4:7], s36 offen offset:%d sc1", UU + 8 * ct, UU + 8 * ct + 3, 1024 * ct)
            a.i("buffer_load_dwordx4 v[%d:%d], v2, s[4:7], s37 offen offset:%d sc1", UU + 8 * ct + 4, UU + 8 * ct + 7, 1024 * ct)
        a.i("buffer_load_dword v%d, v%d, s[4:7], 0 offen sc1", VFU, VFUA)
    u_prefetch(first=True)
    a.i("s_mov_b32 s24, 0")
    a.label("Lb_loop")
    for r in range(16): a.i("v_mov_b32 v%d, 0", ZA + r)
    a.i("s_mul_i32 s34, s24, %d", L.MEM_S); a.i("s_add_u32 s34, s34, s33")
    a.i("s_and_b32 s26, s24, 1"); a.i("s_mul_i32 s26, s26, 10240"); a.i("s_add_u32 s26, s26, %d", B_MEM)
    a.i("v_add_u32 v5, s26, v2")
    a.i("s_cmp_eq_u32 s20, 1"); a.i("s_cbranch_scc1 Lb_bar")
    a.i("v_add_u32 v3, s26, v%d", VMA); a.i("v_add_u32 v4, s26, v%d", VMB)
    a.label("Lb_poll")
    for j in range(3):
        a.i("buffer_load_dwordx4 v[%d:%d], v%d, s[4:7], s34 offen offset:%d sc1", PL + 4 * j, PL + 4 * j + 3, VMA, 1024 * j)
    a.i("buffer_load_dwordx4 v[%d:%d], v%d, s[4:7], s34 offen sc1", PL + 12, PL + 15, VMB)
    a.waitv(0)
    poison_any(a, range(PL, PL + 16), 6)
    poll_tail(a, "Lb_poll")
    for j in range(3): a.i("ds_write_b128 v3, v[%d:%d] offset:%d", PL + 4 * j, PL + 4 * j + 3, 1024 * j)
    a.i("ds_write_b128 v4, v[%d:%d]", PL + 12, PL + 15)
    a.waitl(0)
    a.label("Lb_bar")
    a.barrier()
    tstamp(a, 0)
    for kk in range(10): a.i("ds_read_b128 v[%d:%d], v5 offset:%d", AF + 4 * kk, AF + 4 * kk + 3, kk * 1024)
    for kk in range(10):
        a.waitl(9 - kk)
        for hh in range(2):
            for ct in range(2):
                a.smf(vr(ZA + 4 * (hh * 2 + ct), 4), vr(AF + 4 * kk, 4), breg(b_block(hh, ct, kk)), "v%d" % IDX)
    tstamp(a, 1)
    for ct in range(2):
        for hh in range(2):
            z = ZA + 4 * (hh * 2 + ct)
            a.cvtpk(ZB + 4 * ct + 2 * hh, z, z + 1); a.cvtpk(ZB + 4 * ct + 2 * hh + 1, z + 2, z + 3)
    for hh in range(2):
        z0, z1 = ZA + 4 * (hh * 2), ZA + 4 * (hh * 2 + 1)
        for r in range(4): a.i("v_permlane32_swap_b32 v%d, v%d", z0 + r, z1 + r)
        for r in range(4): a.i("v_add_f32 v%d, v%d, v%d", z0 + r, z0 + r, z1 + r)
        a.cvtpk(ZP + 2 * hh, z0, z0 + 1); a.cvtpk(ZP + 2 * hh + 1, z0 + 2, z0 + 3)
    a.i("v_permlane16_swap_b32 v%d, v%d", ZP, ZP + 2); a.i("v_permlane16_swap_b32 v%d, v%d", ZP + 1, ZP + 3)
    a.i("s_mul_i32 s39, s24, %d", L.ZM_S)
    def pub_zm(): a.i("buffer_store_dwordx4 v[%d:%d], v%d, s[4:7], s39 offen sc1", ZP, ZP + 3, VZM)
    a.i("s_cmp_eq_u32 s24, 63"); a.i("s_cbranch_scc1 Lb_last")
    a.i("s_mul_i32 s36, s24, %d", L.PCH_S); a.i("s_add_u32 s36, s36, s30"); a.i("s_add_u32 s37, s36, 640")
    a.label("Lb_pollp")
    a.i("buffer_load_dwordx4 v[%d:%d], v%d, s[4:7], s36 offen sc1", PXA, PXA + 3, VPX)
    set_exec(a, 0x00ff00ff, 0x00ff00ff)
    a.i("buffer_load_dwordx2 v[%d:%d], v%d, s[4:7], s36 offen sc1", PMA, PMA + 1, VPM)
    a.i("buffer_load_dwordx2 v[%d:%d], v%d, s[4:7], s37 offen sc1", PMA + 2, PMA + 3, VPM)
    full_exec(a)
    a.waitv(0)
    poison_any(a, list(range(PXA, PXA + 4)) + list(range(PMA, PMA + 4)), 6)
    poll_tail(a, "Lb_pollp")
    tstamp(a, 2)
    for ct in range(2): a.mfma32(vr(OUT + 4 * ct, 4), vr(PMA, 4), vr(ZB + 4 * ct, 4), "0")
    for ct in range(2): a.smf(vr(OUT + 4 * ct, 4), vr(PXA, 4), vr(UU + 8 * ct, 8), "v%d" % IDX)
    for r in range(4): a.i("v_permlane32_swap_b32 v%d, v%d", OUT + r, OUT + 4 + r)
    for r in range(4): a.i("v_add_f32 v%d, v%d, v%d", OUT + r, OUT + r, OUT + 4 + r)
    a.i("ds_write_b128 v%d, v[%d:%d]", VRED, OUT, OUT + 3)
    a.waitl(0)
    a.barrier()
    tstamp(a, 3)
    a.i("s_cmp_eq_u32 s20, 2"); a.i("s_cbranch_scc1 Lb_flag")
    a.i("s_cmp_eq_u32 s20, 3"); a.i("s_cbranch_scc1 Lb_zm")
    a.i("v_add_u32 v3, %d, v2", B_RED)
    for w in range(4): a.i("ds_read_b128 v[%d:%d], v3 offset:%d", GG + 4 * (w % 3) if w < 3 else OWN, (GG + 4 * (w % 3) if w < 3 else OWN) + 3, 1024 * w)
    a.waitl(0)
    for r in range(4):
        a.i("v_add_f32 v%d, v%d, v%d", GG + r, GG + r, GG + 4 + r); a.i("v_add_f32 v%d, v%d, v%d", OWN + r, GG + 8 + r, OWN + r)
    for r in range(4): a.i("v_add_f32 v%d, v%d, v%d", OWN + r, GG + r, OWN + r)
    guard(a, range(OWN, OWN + 4))
    a.i("s_mul_i32 s36, s24, %d", L.PART_S); a.i("s_add_u32 s36, s36, s31")
    a.i("s_cmp_eq_u32 s20, 1"); a.i("s_cbranch_scc1 Lb_gather")
    a.i("buffer_store_dwordx4 v[%d:%d], v%d, s[4:7], s36 offen sc1", OWN, OWN + 3, VPART)
    tstamp(a, 4)
    a.i("s_branch Lb_zm")
    a.label("Lb_gather")
    if PRE_GATHER: a.i("s_sleep %d", PRE_GATHER)
    a.label("Lb_pollg")
    for k, r in enumerate((VG1, VG2, VG3)):
        a.i("buffer_load_dwordx4 v[%d:%d], v%d, s[4:7], s36 offen sc1", GG + 4 * k, GG + 4 * k + 3, r)
    a.waitv(0)
    poison_any(a, range(GG, GG + 12), 6)
    poll_tail(a, "Lb_pollg")
    tstamp(a, 5)
    for r in range(4):
        a.i("v_add_f32 v%d, v%d, v%d", OWN + r, OWN + r, GG + r); a.i("v_add_f32 v%d, v%d, v%d", GG + 4 + r, GG + 4 + r, GG + 8 + r)
    for r in range(4): a.i("v_add_f32 v%d, v%d, v%d", OWN + r, OWN + r, GG + 4 + r)
    a.cvtpk(GG, OWN, OWN + 1); a.cvtpk(GG + 1, OWN + 2, OWN + 3)
    a.mfma16(vr(GG + 4, 4), vr(GG, 2), vr(IDV, 2), "0")
    R0 = OWN
    a.cvtpk(R0, GG + 4, GG + 5); a.cvtpk(R0 + 2, GG + 6, GG + 7)
    a.i("v_permlane16_swap_b32 v%d, v%d", R0, R0 + 2)
    for r in (0, 2):
        a.i("v_mov_b32_dpp v%d, v%d row_ror:8 row_mask:0xf bank_mask:0xf", R0 + r + 1, R0 + r)
    guard(a, range(R0, R0 + 4))
    a.i("s_add_u32 s36, s24, 1"); a.i("s_mul_i32 s36, s36, %d", L.MEM_S); a.i("s_add_u32 s36, s36, s33")
    set_exec(a, 0x00ff00ff, 0x00ff00ff)
    store_mode(a, "buffer_store_dwordx4 v[%d:%d], v%d, s[4:7], s36 offen" % (R0, R0 + 3, VMO))
    full_exec(a)
    tstamp(a, 6)
    a.i("s_branch Lb_zm")
    a.label("Lb_flag")
    a.i("v_mov_b32 v6, s24"); a.i("s_mov_b64 exec, 1")
    a.i("buffer_store_dword v6, v%d, s[4:7], s41 offen sc1", VZ); full_exec(a)
    a.label("Lb_zm")
    pub_zm()
    u_prefetch()
    tflush(a)
    a.i("s_add_u32 s24, s24, 1"); a.i("s_branch Lb_loop")
    a.label("Lb_last")
    pub_zm()
    a.waitv(0); a.barrier()
    a.i("s_cmp_lg_u32 s20, 2"); a.i("s_cbranch_scc1 L_exit")
    a.i("v_mov_b32 v6, 64"); a.i("s_mov_b64 exec, 1")
    a.i("buffer_store_dword v6, v%d, s[4:7], s41 offen sc1", VZ)
    stamp_any(a, 2)
    a.i("s_branch L_exit")
```

```python
from asmlib import *
import lay as L

def magic(d, n):
    for sh in range(8, 25):
        m = -(-(1 << sh) // d)
        if m < (1 << 24) and (n - 1) * m < (1 << 32) and all((p * m) >> sh == p // d for p in range(n)):
            return m, sh
    raise ValueError

class K(Asm):
    def i(self, fmt, *args):
        self.lines.append("    " + (fmt % args if args else fmt))
    def ptr(self, sreg, karg):
        self.i("s_load_dwordx2 s[%d:%d], s[0:1], %d", sreg, sreg + 1, karg)
    def srd_tail(self, sreg, nbytes):
        self.i("s_mov_b32 s%d, 0x%x", sreg + 2, nbytes)
        self.i("s_mov_b32 s%d, 0x20000", sreg + 3)
    def divmod_const(self, vq, vr_, vin, d, n):
        m, sh = magic(d, n)
        self.i("v_mul_u32_u24 v%d, 0x%x, v%d", vq, m, vin)
        self.i("v_lshrrev_b32 v%d, %d, v%d", vq, sh, vq)
        self.i("v_mul_u32_u24 v%d, %d, v%d", vr_, d, vq)
        self.i("v_sub_u32 v%d, v%d, v%d", vr_, vin, vr_)
    def vmul(self, vd, const, vs):
        self.i("v_mul_u32_u24 v%d, 0x%x, v%d", vd, const, vs)
    def sadd(self, sd, sa, const):
        self.i("s_add_u32 s%d, s%d, 0x%x", sd, sa, const)
    def mfma32(self, d, a, b, c=None):
        self.i("v_mfma_f32_16x16x32_bf16 %s, %s, %s, %s", d, a, b, d if c is None else c)
    def mfma16(self, d, a, b, c=None):
        self.i("v_mfma_f32_16x16x16_bf16 %s, %s, %s, %s", d, a, b, d if c is None else c)
    def smf(self, d, a, b, idx):
        self.i("v_smfmac_f32_16x16x64_bf16 %s, %s, %s, %s", d, a, b, idx)
    def cvtpk(self, d, a, b):
        self.i("v_cvt_pk_bf16_f32 v%d, v%d, v%d", d, a, b)
    def waitv(self, n): self.i("s_waitcnt vmcnt(%d)", n)
    def waitl(self, n): self.i("s_waitcnt lgkmcnt(%d)", n)
    def barrier(self): self.i("s_barrier")

S_BUDGET = 101

def wait_ge(a, vtmp, voff, soff, sneed, sleep=4):
    lab = a.uid("Lw"); done = a.uid("Lwd")
    a.label(lab)
    a.i("buffer_load_dword v%d, v%d, s[4:7], %s offen sc1", vtmp, voff, soff)
    a.waitv(0)
    a.i("v_cmp_gt_u32 vcc, %s, v%d", sneed, vtmp)
    a.i("s_cbranch_vccz %s", done)
    a.i("s_sub_u32 s%d, s%d, 1", S_BUDGET, S_BUDGET)
    a.i("s_cbranch_scc1 L_abort")
    if sleep: a.i("s_sleep %d", sleep)
    a.i("s_branch %s", lab)
    a.label(done)

PROFILE = False
PROF = 0xF000000
def stamp(a, slot):
    if not PROFILE: return
    lab = a.uid("Lst")
    a.i("s_cmp_lg_u32 s20, 0"); a.i("s_cbranch_scc1 %s", lab)
    a.i("s_memrealtime s[98:99]"); a.i("s_waitcnt lgkmcnt(0)")
    a.i("v_mov_b32 v4, s98"); a.i("s_lshl_b32 s98, s2, 8"); a.i("s_add_u32 s98, s98, 0x%x", PROF + 4 * slot)
    a.i("v_mov_b32 v5, 0")
    a.i("buffer_store_dword v4, v5, s[4:7], s98 offen")
    a.i("s_memtime s[96:97]"); a.i("s_waitcnt lgkmcnt(0)")
    a.i("v_mov_b32 v4, s96")
    a.i("buffer_store_dword v4, v5, s[4:7], s98 offen offset:128")
    a.label(lab)

PROF2 = 0xF100000
def tstamp(a, k):
    if PROFILE: a.i("s_memrealtime s[%d:%d]", 64 + 2 * k, 65 + 2 * k)
def tflush(a):
    if not PROFILE: return
    a.i("s_waitcnt lgkmcnt(0)")
    for k in range(8): a.i("v_writelane_b32 v6, s%d, %d", 64 + 2 * k, k)
    a.i("s_lshl_b32 s98, s2, 2"); a.i("s_add_u32 s98, s98, s20"); a.i("s_lshl_b32 s98, s98, 6"); a.i("s_add_u32 s98, s98, s24")
    a.i("s_lshl_b32 s98, s98, 5"); a.i("s_add_u32 s98, s98, 0x%x", PROF2)
    a.i("v_lshlrev_b32 v3, 2, v1"); a.i("s_mov_b64 exec, 0xff")
    a.i("buffer_store_dword v6, v3, s[4:7], s98 offen"); a.i("s_mov_b64 exec, -1")
```

```python
from kcommon import *
import kproj, ku, kchain, kqa, kw2

def srd_from(a, sreg, karg, size):
    a.ptr(sreg, karg); a.i("s_waitcnt lgkmcnt(0)"); a.srd_tail(sreg, size)

def dispatch(a):
    a.ptr(4, L.A_WS); a.ptr(8, L.A_DBG)
    a.i("v_and_b32 v1, 63, v0"); a.i("v_lshrrev_b32 v3, 6, v0"); a.i("v_lshlrev_b32 v2, 4, v1")
    a.i("v_readfirstlane_b32 s20, v3")
    a.i("s_mov_b32 s%d, 0x100000", S_BUDGET)
    a.i("s_cmp_ge_u32 s2, 256"); a.i("s_cbranch_scc1 L_exit")
    a.i("s_getreg_b32 s22, hwreg(HW_REG_XCC_ID)"); a.i("s_and_b32 s22, s22, 7")
    a.i("s_waitcnt lgkmcnt(0)")
    a.srd_tail(4, L.WS_BYTES); a.srd_tail(8, 256)
    a.i("s_cmp_lg_u32 s20, 0"); a.i("s_cbranch_scc1 Ld_wait")
    a.i("s_lshl_b32 s26, s22, 2"); a.i("v_mov_b32 v4, s26"); a.i("v_mov_b32 v5, 1")
    a.i("s_mov_b64 exec, 1")
    a.i("buffer_atomic_add v5, v4, s[8:11], 0 offen sc0 sc1")
    a.waitv(0)
    a.i("s_mov_b64 exec, -1")
    a.i("v_readfirstlane_b32 s27, v5")
    a.i("v_and_b32 v4, 7, v1"); a.i("v_lshlrev_b32 v4, 2, v4")
    a.label("Ld_poll")
    a.i("buffer_load_dword v6, v4, s[8:11], 0 offen sc1")
    a.waitv(0)
    for k in range(8): a.i("v_readlane_b32 s%d, v6, %d", 32 + k, k)
    a.i("s_add_u32 s26, s32, s33")
    for k in range(2, 8): a.i("s_add_u32 s26, s26, s%d", 32 + k)
    a.i("s_cmp_ge_u32 s26, 256"); a.i("s_cbranch_scc1 Ld_got")
    a.i("s_sub_u32 s%d, s%d, 1", S_BUDGET, S_BUDGET); a.i("s_cbranch_scc1 Ld_giveup")
    a.i("s_sleep 4"); a.i("s_branch Ld_poll")
    a.label("Ld_giveup")
    a.i("s_mov_b32 s27, -1")
    a.label("Ld_got")
    a.i("v_mov_b32 v5, s27")
    a.i("v_cmp_eq_u32 vcc, 8, v1"); a.i("v_cndmask_b32 v6, v6, v5, vcc")
    a.i("v_lshlrev_b32 v4, 2, v1"); a.i("s_mov_b64 exec, 0x1ff")
    a.i("ds_write_b32 v4, v6"); a.i("s_mov_b64 exec, -1")
    a.waitl(0)
    a.label("Ld_wait")
    a.barrier()
    a.i("v_min_u32 v4, 8, v1"); a.i("v_lshlrev_b32 v4, 2, v4")
    a.i("ds_read_b32 v6, v4"); a.waitl(0)
    for k in range(9): a.i("v_readlane_b32 s%d, v6, %d", 32 + k, k)
    a.barrier()
    a.i("s_cmp_eq_u32 s40, -1"); a.i("s_cbranch_scc1 L_exit")
    a.i("s_mov_b32 s41, 0")
    for y in range(4):
        a.i("s_min_u32 s%d, s%d, 28", 44 + y, 32 + y)
        a.i("s_sub_u32 s26, 28, s%d", 44 + y); a.i("s_add_u32 s41, s41, s26")
    a.i("s_cmp_lg_u32 s41, 0"); a.i("s_cselect_b32 s23, 1, 0")
    a.i("s_cmp_lt_u32 s22, 4"); a.i("s_cbranch_scc0 Ld_surplus")
    a.i("s_cmp_lt_u32 s40, 28"); a.i("s_cbranch_scc1 Ld_chain")
    a.label("Ld_surplus")
    a.i("s_mov_b32 s42, 0"); a.i("s_mov_b32 s43, 0")
    for y in (4, 5, 6, 7, 0, 1, 2, 3):
        lab = a.uid("Ld_y")
        if y < 4: a.i("s_sub_u32 s26, s%d, s%d", 32 + y, 44 + y)
        else: a.i("s_mov_b32 s26, s%d", 32 + y)
        a.i("s_cmp_eq_u32 s22, %d", y); a.i("s_cbranch_scc0 %s", lab)
        a.i("s_mov_b32 s48, s42")
        if y < 4: a.i("s_mov_b32 s43, s%d", 44 + y)
        a.label(lab)
        a.i("s_add_u32 s42, s42, s26")
    a.i("s_sub_u32 s26, s40, s43"); a.i("s_add_u32 s48, s48, s26")
    a.i("s_cmp_lt_u32 s48, s41"); a.i("s_cbranch_scc0 Ld_worker")
    for y in range(4):
        lab = a.uid("Ld_f")
        a.i("s_sub_u32 s26, 28, s%d", 44 + y)
        a.i("s_cmp_lt_u32 s48, s26"); a.i("s_cbranch_scc0 %s", lab)
        a.i("s_mov_b32 s22, %d", y); a.i("s_add_u32 s40, s%d, s48", 44 + y); a.i("s_branch Ld_chain")
        a.label(lab)
        a.i("s_sub_u32 s48, s48, s26")
    a.i("s_branch L_exit")
    a.label("Ld_worker")
    a.i("s_sub_u32 s48, s48, s41")
    a.i("s_cmp_ge_u32 s48, 144"); a.i("s_cbranch_scc1 L_exit")
    a.i("s_cmp_ge_u32 s48, 128"); a.i("s_cbranch_scc1 Ld_f1a")
    a.i("s_lshr_b32 s26, s48, 5"); a.i("s_lshl_b32 s26, s26, 3"); a.i("s_and_b32 s21, s48, 7"); a.i("s_add_u32 s21, s21, s26")
    a.i("s_bfe_u32 s26, s48, 0x20003")
    a.i("s_cmp_eq_u32 s26, 0"); a.i("s_cbranch_scc1 Ld_k")
    a.i("s_cmp_eq_u32 s26, 1"); a.i("s_cbranch_scc1 Ld_v")
    a.i("s_cmp_eq_u32 s26, 2"); a.i("s_cbranch_scc1 Ld_u")
    a.i("s_branch Ld_qa")
    a.label("Ld_chain")
    a.i("s_cmp_lt_u32 s40, 8"); a.i("s_cbranch_scc1 Ld_qk")
    a.i("s_sub_u32 s21, s40, 8"); a.i("s_branch Ld_b")

def gen_main(only=None):
    a = K()
    dispatch(a)
    far = lambda lab: a.i("s_branch %s", lab)
    a.label("Ld_qk")
    a.i("s_lshl_b32 s21, s22, 3"); a.i("s_add_u32 s21, s21, s40")
    srd_from(a, 8, L.A_WQ, L.SZ_W); srd_from(a, 12, L.A_WK, L.SZ_W)
    kchain.role_qk(a)
    a.label("Ld_b")
    kchain.role_b(a)
    a.label("Ld_k")
    srd_from(a, 8, L.A_WK, L.SZ_W); a.i("s_mov_b32 s30, 0x%x", L.KX); a.i("s_mov_b32 s31, %d", L.F_PROGK); a.i("s_mov_b32 s49, 0"); a.i("s_branch Ld_kv")
    a.label("Ld_v")
    srd_from(a, 8, L.A_WV, L.SZ_W); a.i("s_mov_b32 s30, 0x%x", L.VX); a.i("s_mov_b32 s31, %d", L.F_PROGV); a.i("s_mov_b32 s49, 1")
    a.label("Ld_kv")
    kproj.role_kv(a, "Ld_after_kv")
    a.label("Ld_after_kv")
    a.i("s_cmp_eq_u32 s49, 0"); a.i("s_cbranch_scc1 Ld_bx")
    a.i("s_cmp_lt_u32 s21, 16"); a.i("s_cbranch_scc0 Ld_tof2")
    a.i("s_mov_b32 s22, 1"); a.i("s_branch Ld_f1")
    a.label("Ld_tof2")
    a.i("s_sub_u32 s21, s21, 16"); a.i("s_lshr_b32 s22, s21, 3"); a.i("s_and_b32 s21, s21, 7")
    srd_from(a, 8, L.A_WD, L.SZ_FF)
    kw2.role_f2(a)
    a.label("Ld_u")
    srd_from(a, 8, L.A_WO, L.SZ_W)
    ku.role_u(a, "Ld_after_u")
    a.label("Ld_after_u")
    a.i("s_add_u32 s21, s21, 32")
    a.label("Ld_bx")
    kw2.role_bx(a)
    a.label("Ld_qa")
    srd_from(a, 8, L.A_WQ, L.SZ_W)
    kqa.role_qa(a)
    a.label("Ld_f1a")
    a.i("s_sub_u32 s21, s48, 128"); a.i("s_mov_b32 s22, 0")
    a.label("Ld_f1")
    srd_from(a, 8, L.A_WG, L.SZ_FF); srd_from(a, 12, L.A_WU, L.SZ_FF)
    kw2.role_f1(a)
    a.label("L_abort"); a.label("L_exit")
    a.i("s_endpgm")
    return a.text()
```

```python
from kcommon import *

BV_STR = 400; BO_STR = 672; BO_BASE = 160 * BV_STR; BO_BUF = 32 * BO_STR
BG_WV = 128
BG_WO = 188
BG_G, BG_L = 248, 100
def bgemm_issue(a):
    a.i("s_lshr_b32 s34, s2, 3"); a.i("s_bfe_u32 s35, s2, 0x20001"); a.i("s_and_b32 s36, s2, 1")
    a.i("s_mul_i32 s37, s35, %d", 160 * 12288); a.i("s_mul_i32 s38, s34, 384"); a.i("s_add_u32 s37, s37, s38")
    for j in range(15):
        a.i("v_add_u32 v3, %d, v0", 256 * j)
        a.divmod_const(4, 5, 3, 24, 3840)
        a.vmul(6, 12288, 4); a.i("v_lshl_add_u32 v6, v5, 4, v6")
        a.i("buffer_load_dwordx4 v[%d:%d], v6, s[24:27], s37 offen", BG_WV + 4 * j, BG_WV + 4 * j + 3)
        a.vmul(BG_L + j, BV_STR, 4); a.i("v_lshl_add_u32 v%d, v5, 4, v%d", BG_L + j, BG_L + j)
    for j in range(5):
        a.i("v_add_u32 v3, %d, v0", 256 * j)
        a.divmod_const(4, 5, 3, 40, 1280)
        a.vmul(BG_G + j, 1280, 4); a.i("v_lshl_add_u32 v%d, v5, 4, v%d", BG_G + j, BG_G + j)
        a.vmul(BG_L + 15 + j, BO_STR, 4); a.i("v_lshl_add_u32 v%d, v5, 4, v%d", BG_L + 15 + j, BG_L + 15 + j)
        a.i("v_add_u32 v%d, %d, v%d", BG_L + 15 + j, BO_BASE, BG_L + 15 + j)
    a.i("s_mul_i32 s39, s34, 245760"); a.i("s_mul_i32 s38, s36, 640"); a.i("s_add_u32 s39, s39, s38")
    for c in range(3): bgemm_wo_issue(a, c)
def bgemm_wo_issue(a, c):
    r = BG_WO + 20 * (c % 3)
    for j in range(5):
        a.i("buffer_load_dwordx4 v[%d:%d], v%d, s[28:31], s39 offen", r + 4 * j, r + 4 * j + 3, BG_G + j)
    a.i("s_add_u32 s39, s39, %d", 32 * 1280)
def bgemm_run(a):
    WO, AF, AC, O = 0, 8, 56, 76
    a.i("v_and_b32 v1, 63, v0"); a.i("v_lshrrev_b32 v3, 6, v0"); a.i("v_lshlrev_b32 v2, 4, v1")
    a.i("v_readfirstlane_b32 s20, v3")
    a.waitv(0)
    for j in range(15): a.i("ds_write_b128 v%d, v[%d:%d]", BG_L + j, BG_WV + 4 * j, BG_WV + 4 * j + 3)
    TB = 124
    a.i("v_and_b32 v3, 15, v1"); a.i("v_lshrrev_b32 v4, 4, v1")
    a.i("v_lshrrev_b32 v5, 2, v3"); a.i("v_lshl_add_u32 v5, v4, 3, v5")
    a.vmul(TB, BO_STR, 5); a.i("v_and_b32 v5, 3, v3"); a.i("v_lshl_add_u32 v%d, v5, 3, v%d", TB, TB)
    a.i("s_mul_i32 s26x, s20, 160".replace("s26x", "s40")); a.i("s_add_u32 s40, s40, %d", BO_BASE); a.i("v_add_u32 v%d, s40, v%d", TB, TB)
    for c in range(6):
        r = BG_WO + 20 * (c % 3); b = (c & 1) * BO_BUF
        if c >= 3: a.waitv(min(10, 5 * (5 - c)))
        for j in range(5): a.i("ds_write_b128 v%d, v[%d:%d] offset:%d", BG_L + 15 + j, r + 4 * j, r + 4 * j + 3, b)
        a.waitl(0)
        if c + 3 < 6: bgemm_wo_issue(a, c + 3)
        a.barrier()
        for j in range(5):
            for hf in range(2):
                d = WO + (j * 6 + c) * 4 + 2 * hf
                a.i("ds_read_b64_tr_b16 a[%d:%d], v%d offset:%d", d, d + 1, TB, b + 4 * hf * BO_STR + 32 * j)
    a.waitl(0)
    VA = 125; VO = 126
    a.vmul(VA, BV_STR, 3); a.i("v_lshl_add_u32 v%d, v4, 4, v%d", VA, VA)
    a.i("s_lshr_b32 s40, s34, 3"); a.i("s_mul_i32 s40, s40, 80"); a.i("s_bfe_u32 s41, s34, 0x20001"); a.i("s_add_u32 s40, s40, s41")
    a.i("s_mul_i32 s40, s40, %d", L.BB_W); a.i("s_and_b32 s41, s34, 1"); a.i("s_lshl_b32 s41, s41, 12"); a.i("s_add_u32 s40, s40, s41")
    a.i("s_add_u32 s40, s40, 0x%x", L.BB)
    a.i("s_mul_i32 s42, s36, 20"); a.i("s_mul_i32 s41, s20, 5"); a.i("s_add_u32 s42, s42, s41")
    for j in range(5):
        a.i("s_add_u32 s41, s42, %d", j); a.i("s_lshr_b32 s43, s41, 1"); a.i("s_mul_i32 s43, s43, %d", 4 * L.BB_W)
        a.i("s_and_b32 s41, s41, 1"); a.i("s_lshl_b32 s41, s41, 11"); a.i("s_add_u32 s43, s43, s41"); a.i("s_add_u32 s%d, s43, s40", 44 + j)
    a.i("s_mul_i32 s49, s35, 5")
    def rd(T):
        r = AF + 24 * (T & 1)
        for ke in range(6): a.i("ds_read_b128 v[%d:%d], v%d offset:%d", r + 4 * ke, r + 4 * ke + 3, VA, T * 16 * BV_STR + ke * 64)
    rd(0)
    for T in range(10):
        r = AF + 24 * (T & 1)
        if T + 1 < 10: rd(T + 1)
        a.waitl(6 if T + 1 < 10 else 0)
        for ke in range(6):
            for j in range(5):
                a.mfma32(vr(AC + 4 * j, 4), vr(r + 4 * ke, 4), ar(WO + (j * 6 + ke) * 4, 4), "0" if ke == 0 else None)
        tt = T & 1
        for j in range(5):
            a.cvtpk(O + 4 * j + 2 * tt, AC + 4 * j, AC + 4 * j + 1); a.cvtpk(O + 4 * j + 2 * tt + 1, AC + 4 * j + 2, AC + 4 * j + 3)
        if tt == 1:
            a.i("s_add_u32 s50, s49, %d", T >> 1); a.i("s_lshr_b32 s51, s50, 1"); a.i("s_lshl_b32 s51, s51, 13")
            a.i("s_and_b32 s50, s50, 1"); a.i("s_lshl_b32 s50, s50, 10"); a.i("s_add_u32 s50, s50, s51")
            for j in range(5):
                a.i("s_add_u32 s51, s50, s%d", 44 + j)
                a.i("buffer_store_dwordx4 v[%d:%d], v2, s[4:7], s51 offen", O + 4 * j, O + 4 * j + 3)

def gen_prep():
    a = K()
    a.ptr(4, L.A_WS); a.ptr(8, L.A_X); a.ptr(12, L.A_MEM0); a.ptr(24, L.A_WV); a.ptr(28, L.A_WO)
    a.i("v_and_b32 v1, 63, v0")
    a.i("v_lshrrev_b32 v2, 6, v0")
    a.i("s_waitcnt lgkmcnt(0)")
    a.srd_tail(4, L.WS_BYTES); a.srd_tail(8, L.SZ_X); a.srd_tail(12, L.SZ_MEM0); a.srd_tail(24, L.SZ_W); a.srd_tail(28, L.SZ_W)
    a.i("s_cmp_ge_u32 s2, 256"); a.i("s_cbranch_scc1 Lp_exit")
    bgemm_issue(a)
    a.i("s_cmp_gt_u32 s2, 128"); a.i("s_cbranch_scc1 Lp_poison")
    a.i("s_cmp_eq_u32 s2, 128"); a.i("s_cbranch_scc1 Lp_mem0")
    a.i("s_lshl_b32 s20, s2, 4")
    a.i("v_lshrrev_b32 v3, 4, v0")
    a.i("v_add_u32 v3, s20, v3")
    a.i("v_and_b32 v4, 15, v0")
    a.vmul(5, 1280, 3)
    a.i("v_lshl_add_u32 v5, v4, 4, v5")
    for i in range(5):
        a.i("buffer_load_dwordx4 v[%d:%d], v5, s[8:11], 0 offen offset:%d", 8 + 4 * i, 11 + 4 * i, 256 * i)
    a.i("v_lshrrev_b32 v6, 4, v3"); a.vmul(6, 20480, 6)
    a.i("v_and_b32 v7, 15, v3"); a.i("v_lshl_add_u32 v6, v7, 4, v6"); a.i("v_lshl_add_u32 v6, v4, 8, v6")
    a.waitv(0)
    for k in range(20):
        a.i("v_lshlrev_b32 v%d, 16, v%d", 32 + 2 * k, 8 + k)
        a.i("v_and_b32 v%d, 0xffff0000, v%d", 33 + 2 * k, 8 + k)
    def rowsum(dst):
        for sh in (8, 4, 2, 1):
            a.i("v_add_f32_dpp v%d, v%d, v%d row_ror:%d row_mask:0xf bank_mask:0xf", dst, dst, dst, sh)
    a.i("v_add_f32 v72, v32, v33"); a.i("v_add_f32 v73, v34, v35")
    for k in range(4, 40, 2):
        a.i("v_add_f32 v72, v72, v%d", 32 + k); a.i("v_add_f32 v73, v73, v%d", 33 + k)
    a.i("v_add_f32 v72, v72, v73")
    rowsum(72)
    a.i("v_mul_f32 v72, 0x%x, v72", 0x3acccccd)
    for k in range(40): a.i("v_sub_f32 v%d, v%d, v72", 32 + k, 32 + k)
    a.i("v_mul_f32 v73, v32, v32"); a.i("v_mul_f32 v74, v33, v33")
    for k in range(2, 40, 2):
        a.i("v_fmac_f32 v73, v%d, v%d", 32 + k, 32 + k); a.i("v_fmac_f32 v74, v%d, v%d", 33 + k, 33 + k)
    a.i("v_add_f32 v73, v73, v74")
    rowsum(73)
    a.i("v_mov_b32 v74, 0x3727c5ac")
    a.i("v_fmac_f32 v74, 0x3acccccd, v73")
    a.i("v_rsq_f32 v74, v74")
    for k in range(40): a.i("v_mul_f32 v%d, v%d, v74", 32 + k, 32 + k)
    for k in range(20): a.cvtpk(8 + k, 32 + 2 * k, 33 + 2 * k)
    a.i("s_mov_b32 s21, 0x%x", L.XN)
    for i in range(5):
        a.i("buffer_store_dwordx4 v[%d:%d], v6, s[4:7], s21 offen", 8 + 4 * i, 11 + 4 * i)
        if i < 4: a.i("s_add_u32 s21, s21, 4096")
    a.i("s_branch Lp_end")
    a.label("Lp_mem0")
    for j in range(3):
        a.i("v_add_u32 v3, %d, v0", 256 * j)
        a.i("v_and_b32 v4, 7, v3")
        a.i("v_lshrrev_b32 v5, 3, v3")
        a.vmul(6, 1280, 4)
        a.i("v_lshrrev_b32 v7, 3, v5"); a.i("v_lshl_add_u32 v6, v7, 7, v6")
        a.i("v_bfe_u32 v7, v5, 2, 1"); a.i("v_lshl_add_u32 v6, v7, 6, v6")
        a.i("v_bfe_u32 v7, v5, 1, 1"); a.i("v_lshl_add_u32 v6, v7, 4, v6")
        a.i("v_and_b32 v7, 1, v5"); a.i("v_lshl_add_u32 v6, v7, 2, v6")
        for q, off in enumerate((0, 32, 8, 40)):
            a.i("buffer_load_dword v%d, v6, s[12:15], 0 offen offset:%d", 8 + q, off)
        a.i("v_lshlrev_b32 v12, 4, v3")
        a.i("v_cmp_gt_u32 vcc, 640, v3")
        a.i("s_and_saveexec_b64 s[22:23], vcc")
        a.waitv(0)
        for x in range(4):
            a.i("s_mov_b32 s21, 0x%x", L.MEM + x * 10240)
            a.i("buffer_store_dwordx4 v[8:11], v12, s[4:7], s21 offen")
        a.i("s_mov_b64 exec, s[22:23]")
        a.waitv(0)
    for k in range(4): a.i("v_mov_b32 v%d, 0", 8 + k)
    a.i("v_lshlrev_b32 v12, 4, v0")
    for j in range(L.F_END // 4096):
        a.i("s_mov_b32 s21, %d", 4096 * j)
        a.i("buffer_store_dwordx4 v[8:11], v12, s[4:7], s21 offen")
    a.i("s_branch Lp_end")
    a.label("Lp_poison")
    a.i("s_sub_u32 s20, s2, 129"); a.i("s_lshl_b32 s20, s20, 12")
    a.i("s_add_u32 s20, s20, 0x%x", L.POISON_BEG)
    a.i("v_lshlrev_b32 v12, 4, v0")
    for k in range(4): a.i("v_mov_b32 v%d, -1", 8 + k)
    n = -(-(L.POISON_END - L.POISON_BEG) // (127 * 4096))
    for it in range(n):
        a.i("s_cmp_ge_u32 s20, 0x%x", L.POISON_END)
        a.i("s_cbranch_scc1 Lp_end")
        a.i("buffer_store_dwordx4 v[8:11], v12, s[4:7], s20 offen")
        a.i("s_add_u32 s20, s20, 0x%x", 127 * 4096)
    a.label("Lp_end")
    bgemm_run(a)
    a.label("Lp_exit")
    a.i("s_endpgm")
    return a.text()
```

```python
from kcommon import *
WROW = 416
WBUF = 64 * WROW
ACC = 64
RING = 24

def load_stationary_192(a, ffn=False):
    G, Ld, TB, STG = 8, 14, 20, 24
    if not ffn:
        for j in range(6):
            a.i("v_add_u32 v3, %d, v0", 256 * j)
            a.divmod_const(4, 5, 3, 24, 1536)
            a.vmul(G + j, 12288, 4); a.i("v_lshl_add_u32 v%d, v5, 4, v%d", G + j, G + j)
            a.vmul(Ld + j, WROW, 4); a.i("v_lshl_add_u32 v%d, v5, 4, v%d", Ld + j, Ld + j)
        a.i("s_mul_i32 s25, s21, 384"); chunk = 64 * 12288
    else:
        for j in range(3):
            a.i("v_add_u32 v3, %d, v0", 256 * j)
            a.divmod_const(4, 5, 3, 12, 768)
            a.vmul(G + j, 3072, 4); a.i("v_lshl_add_u32 v%d, v5, 4, v%d", G + j, G + j)
            a.vmul(Ld + j, WROW, 4); a.i("v_lshl_add_u32 v%d, v5, 4, v%d", Ld + j, Ld + j)
            a.i("v_add_u32 v%d, 192, v%d", Ld + 3 + j, Ld + j)
        a.i("s_mul_i32 s25, s21, 192"); chunk = 64 * 3072
    a.i("v_and_b32 v3, 15, v1"); a.i("v_lshrrev_b32 v4, 4, v1")
    a.i("v_lshrrev_b32 v5, 2, v3"); a.i("v_lshl_add_u32 v5, v4, %d, v5", 2 if ffn else 3)
    a.vmul(TB, WROW, 5)
    a.i("v_and_b32 v3, 3, v3")
    if not ffn:
        a.i("v_lshl_add_u32 v%d, v3, 3, v%d", TB, TB)
        a.i("s_mul_i32 s26, s20, 96")
    else:
        a.i("v_and_b32 v4, 1, v3"); a.i("v_lshl_add_u32 v%d, v4, 3, v%d", TB, TB)
        a.i("v_lshrrev_b32 v4, 1, v3"); a.vmul(4, 192, 4); a.i("v_add_u32 v%d, v4, v%d", TB, TB)
        a.i("s_mul_i32 s26, s20, 48")
    a.i("v_add_u32 v%d, s26, v%d", TB, TB)
    def issue(c):
        r = STG + 24 * (c % 3)
        for j in range(6):
            if not ffn: a.i("buffer_load_dwordx4 v[%d:%d], v%d, s[8:11], s25 offen", r + 4 * j, r + 4 * j + 3, G + j)
            else: a.i("buffer_load_dwordx4 v[%d:%d], v%d, s[%d:%d], s25 offen", r + 4 * j, r + 4 * j + 3, G + j % 3, 8 if j < 3 else 12, 11 if j < 3 else 15)
        a.i("s_add_u32 s25, s25, 0x%x", chunk)
    for c in range(3): issue(c)
    for c in range(10):
        r = STG + 24 * (c % 3); b = (c & 1) * WBUF
        a.waitv(min(12, 6 * (9 - c)))
        for j in range(6):
            a.i("ds_write_b128 v%d, v[%d:%d] offset:%d", Ld + j, r + 4 * j, r + 4 * j + 3, b)
        a.waitl(0)
        if c + 3 < 10: issue(c + 3)
        a.barrier()
        for kkl in range(2):
            for t in range(3):
                for hf in range(2):
                    d = (t * 20 + 2 * c + kkl) * 4 + 2 * hf
                    a.i("ds_read_b64_tr_b16 a[%d:%d], v%d offset:%d", d, d + 1, TB, b + (32 * kkl + (16 if ffn else 4) * hf) * WROW + (16 if ffn else 32) * t)
    a.waitl(0)
    a.barrier()

def dma_piece(a, p, sg, lds_base_s):
    if p % 4 == 0:
        a.i("s_add_u32 m0, s%d, %d", lds_base_s, (p // 4) * 4096)
        a.i("s_add_u32 s%d, s%d, %d", sg + 1, sg, (p // 4) * 4096)
    a.i("buffer_load_dwordx4 v2, s[4:7], s%d offen offset:%d sc1 lds", sg + 1, (p % 4) * 1024)

def gemm_core(a, vb, hook=None):
    def rd(kk):
        for rt in range(2):
            r = RING + ((kk % 4) * 2 + rt) * 4
            a.i("ds_read_b128 v[%d:%d], v%d offset:%d", r, r + 3, vb, rt * 20480 + kk * 1024)
    for kk in range(3): rd(kk)
    for kk in range(20):
        if kk + 3 < 20: rd(kk + 3)
        a.waitl(min(6, 2 * (19 - kk)))
        for t in range(3):
            for rt in range(2):
                r = RING + ((kk % 4) * 2 + rt) * 4
                d = ACC + (t * 2 + rt) * 4
                a.mfma32(vr(d, 4), ar((t * 20 + kk) * 4, 4), vr(r, 4), "0" if kk == 0 else None)
        if hook: hook(kk)

def cvt_store_order(a, o):
    for rt in range(2):
        for t in range(2):
            d = ACC + (t * 2 + rt) * 4
            a.cvtpk(o + rt * 4 + t * 2, d, d + 1); a.cvtpk(o + rt * 4 + t * 2 + 1, d + 2, d + 3)
    for rt in range(2):
        d = ACC + (2 * 2 + rt) * 4
        a.cvtpk(o + 8 + rt * 2, d, d + 1); a.cvtpk(o + 8 + rt * 2 + 1, d + 2, d + 3)

def top_sync(a, nyoung, sflag, vzero, vtmp):
    l1 = a.uid("Lts"); l2 = a.uid("Lts"); l3 = a.uid("Lts")
    a.i("s_cmp_lt_u32 s24, 4"); a.i("s_cbranch_scc1 %s", l1)
    a.waitv(nyoung); a.i("s_sub_u32 s32, s24, 1"); a.i("s_branch %s", l2)
    a.label(l1)
    a.waitv(0); a.i("s_mov_b32 s32, s24")
    a.label(l2)
    a.barrier()
    a.i("s_cmp_lg_u32 s20, 0"); a.i("s_cbranch_scc1 %s", l3)
    a.i("v_mov_b32 v%d, s32", vtmp)
    a.i("s_mov_b64 exec, 1")
    a.i("buffer_store_dword v%d, v%d, s[4:7], s%d offen sc1", vtmp, vzero, sflag)
    a.i("s_mov_b64 exec, -1")
    a.label(l3)

def final_flag(a, sflag, vzero, vtmp):
    lab = a.uid("Lff")
    a.waitv(0); a.barrier()
    a.i("s_cmp_lg_u32 s20, 0"); a.i("s_cbranch_scc1 %s", lab)
    a.i("v_mov_b32 v%d, 64", vtmp); a.i("s_mov_b64 exec, 1")
    a.i("buffer_store_dword v%d, v%d, s[4:7], s%d offen sc1", vtmp, vzero, sflag)
    a.i("s_mov_b64 exec, -1")
    a.label(lab)

def role_kv(a, nxt):
    stamp(a, 0)
    load_stationary_192(a)
    stamp(a, 1)
    O = 96; VB = 92; VF = 93
    a.i("s_mul_i32 s32, s21, 12288"); a.i("s_mul_i32 s33, s20, 3072")
    a.i("s_add_u32 s30, s30, s32"); a.i("s_add_u32 s30, s30, s33")
    a.i("s_lshl_b32 s32, s21, 7"); a.i("s_add_u32 s31, s31, s32")
    a.i("v_mov_b32 v%d, 0", VF)
    a.i("s_mul_i32 s34, s20, 10240")
    a.i("s_add_u32 s35, s34, 0x%x", L.XN)
    a.i("s_mov_b32 s37, s34")
    for p in range(10): dma_piece(a, p, 35, 37)
    a.i("s_mov_b32 s24, 0")
    a.waitv(0)
    a.label("Lkv_loop")
    top_sync(a, 3, 31, VF, 94)
    a.i("s_add_u32 s32, s24, 1"); a.i("s_min_u32 s33, s32, 63")
    a.i("s_mul_i32 s35, s33, %d", L.XN_S); a.i("s_add_u32 s35, s35, s34"); a.i("s_add_u32 s35, s35, 0x%x", L.XN)
    a.i("s_and_b32 s32, s32, 1"); a.i("s_mul_i32 s37, s32, 40960"); a.i("s_add_u32 s37, s37, s34")
    a.i("s_and_b32 s32, s24, 1"); a.i("s_mul_i32 s32, s32, 40960")
    a.i("v_add_u32 v%d, s32, v2", VB)
    gemm_core(a, VB, hook=lambda kk: dma_piece(a, kk, 35, 37) if kk < 10 else None)
    cvt_store_order(a, O)
    a.i("s_mul_i32 s32, s24, %d", L.KX_S); a.i("s_add_u32 s32, s32, s30")
    for j in range(3):
        a.i("buffer_store_dwordx4 v[%d:%d], v2, s[4:7], s32 offen offset:%d sc1", O + 4 * j, O + 4 * j + 3, 1024 * j)
    a.i("s_add_u32 s24, s24, 1"); a.i("s_cmp_lt_u32 s24, 64"); a.i("s_cbranch_scc1 Lkv_loop")
    final_flag(a, 31, VF, 94)
    stamp(a, 2)
    a.i("s_branch %s", nxt)
```

```python
from kcommon import *
from kproj import *
from kchain import set_exec, full_exec, rowmax, check_flag_cached

def softmax_rows(a, T, n, M, TT, sc):
    a.i("v_max3_f32 v%d, v%d, v%d, v%d", M, T, T + 1, T + 2)
    k = 3
    while k + 1 < n: a.i("v_max3_f32 v%d, v%d, v%d, v%d", M, M, T + k, T + k + 1); k += 2
    if k < n: a.i("v_max_f32 v%d, v%d, v%d", M, M, T + k)
    rowmax(a, M, TT, "v_max_f32")
    a.i("v_mul_f32 v%d, s%d, v%d", M, sc, M)
    for k in range(n): a.i("v_fma_f32 v%d, v%d, s%d, -v%d", T + k, T + k, sc, M)
    for k in range(n): a.i("v_exp_f32 v%d, v%d", T + k, T + k)
    a.i("v_add_f32 v%d, v%d, v%d", M, T, T + 1); a.i("v_add_f32 v%d, v%d, v%d", TT, T + 2, T + 3)
    for k in range(4, n, 2):
        a.i("v_add_f32 v%d, v%d, v%d", M, M, T + k); a.i("v_add_f32 v%d, v%d, v%d", TT, TT, T + k + 1)
    a.i("v_add_f32 v%d, v%d, v%d", M, M, TT)
    rowmax(a, M, TT, "v_add_f32")
    a.i("v_rcp_f32 v%d, v%d", M, M)
    for k in range(n): a.i("v_mul_f32 v%d, v%d, v%d", T + k, T + k, M)

def role_qa(a):
    stamp(a, 0)
    load_stationary_192(a)
    stamp(a, 1)
    O, KX_, KM_, T, VB, VZ, VFK, VFM, VKM4, VKM2, VSP, VPM, NEG = 96, 108, 120, 128, 92, 93, 94, 95, 126, 127, 148, 149, 150
    SP = 81920
    a.i("v_mov_b32 v%d, 0", VZ); a.i("v_mov_b32 v%d, 0", VFK); a.i("v_mov_b32 v%d, 0", VFM); a.i("v_mov_b32 v%d, 0xff800000", NEG)
    a.i("v_or_b32 v3, 8, v1"); a.i("v_lshlrev_b32 v%d, 4, v3", VKM4); a.i("v_lshlrev_b32 v%d, 3, v3", VKM2)
    a.i("s_mul_i32 s26, s20, 5120"); a.i("s_add_u32 s26, s26, %d", SP); a.i("v_add_u32 v%d, s26, v2", VSP)
    a.i("v_and_b32 v3, 15, v1"); a.i("v_lshrrev_b32 v4, 4, v1"); a.i("v_and_b32 v5, 1, v4")
    a.i("v_lshlrev_b32 v5, 3, v5"); a.i("v_lshl_add_u32 v5, v3, 4, v5")
    a.i("s_lshl_b32 s26, s20, 13"); a.i("s_lshl_b32 s27, s21, 8"); a.i("s_add_u32 s26, s26, s27"); a.i("s_add_u32 s26, s26, 0x%x", L.PM)
    a.i("v_add_u32 v%d, s26, v5", VPM)
    a.i("v_lshlrev_b32 v5, 2, v4")
    for r in range(4):
        a.i("v_add_u32 v6, %d, v5", r); a.i("v_cmp_le_u32 s[%d:%d], v6, v3", 44 + 2 * r, 45 + 2 * r)
    a.i("s_mul_i32 s28, s21, 12288"); a.i("s_mul_i32 s26, s20, 3072"); a.i("s_add_u32 s28, s28, s26"); a.i("s_add_u32 s28, s28, 0x%x", L.KX)
    a.i("s_mul_i32 s29, s21, 6144"); a.i("s_mul_i32 s26, s20, 1536"); a.i("s_add_u32 s29, s29, s26"); a.i("s_add_u32 s29, s29, 0x%x", L.KM)
    a.i("s_lshl_b32 s30, s21, 11"); a.i("s_lshl_b32 s26, s20, 10"); a.i("s_add_u32 s30, s30, s26"); a.i("s_add_u32 s30, s30, 0x%x", L.PX)
    a.i("s_lshl_b32 s26, s21, 7"); a.i("s_add_u32 s31, s26, %d", L.F_PROGP); a.i("s_add_u32 s41, s26, %d", L.F_PROGK); a.i("s_add_u32 s42, s26, %d", L.F_PROGKM)
    a.i("s_mov_b32 s40, 0x3dd53b95")
    a.i("s_mul_i32 s34, s20, 10240"); a.i("s_add_u32 s35, s34, 0x%x", L.XN); a.i("s_mov_b32 s37, s34")
    for p in range(10): dma_piece(a, p, 35, 37)
    a.i("s_mov_b32 s24, 0")
    a.waitv(0); a.barrier()
    a.label("Lqa_loop")
    a.i("s_add_u32 s43, s24, 1")
    check_flag_cached(a, VFK, VZ, "s41", "s43")
    a.i("s_mul_i32 s32, s24, %d", L.KX_S); a.i("s_add_u32 s32, s32, s28")
    for j in range(3):
        a.i("buffer_load_dwordx4 v[%d:%d], v2, s[4:7], s32 offen offset:%d sc1", KX_ + 4 * j, KX_ + 4 * j + 3, 1024 * j)
    a.i("buffer_load_dword v%d, v%d, s[4:7], s41 offen sc1", VFK, VZ)
    a.i("s_min_u32 s33, s43, 63")
    a.i("s_mul_i32 s35, s33, %d", L.XN_S); a.i("s_add_u32 s35, s35, s34"); a.i("s_add_u32 s35, s35, 0x%x", L.XN)
    a.i("s_and_b32 s32, s43, 1"); a.i("s_mul_i32 s37, s32, 40960"); a.i("s_add_u32 s37, s37, s34")
    a.i("s_and_b32 s32, s24, 1"); a.i("s_mul_i32 s32, s32, 40960"); a.i("v_add_u32 v%d, s32, v2", VB)
    gemm_core(a, VB, hook=lambda kk: dma_piece(a, kk, 35, 37) if kk < 10 else None)
    cvt_store_order(a, O)
    a.waitv(0); a.barrier()
    lab = a.uid("Lqa_nf")
    a.i("s_cmp_lg_u32 s20, 0"); a.i("s_cbranch_scc1 %s", lab)
    a.i("v_mov_b32 v6, s24"); a.i("s_mov_b64 exec, 1")
    a.i("buffer_store_dword v6, v%d, s[4:7], s31 offen sc1", VZ); full_exec(a)
    a.label(lab)
    check_flag_cached(a, VFM, VZ, "s42", "s43")
    a.i("s_mul_i32 s32, s24, %d", L.KM_S); a.i("s_add_u32 s32, s32, s29")
    a.i("buffer_load_dwordx4 v[%d:%d], v%d, s[4:7], s32 offen sc1", KM_, KM_ + 3, VKM4)
    a.i("buffer_load_dwordx2 v[%d:%d], v%d, s[4:7], s32 offen offset:1024 sc1", KM_ + 4, KM_ + 5, VKM2)
    a.i("buffer_load_dword v%d, v%d, s[4:7], s42 offen sc1", VFM, VZ)
    q32 = lambda rt: vr(O + 4 * rt, 4); q16 = lambda rt: vr(O + 8 + 2 * rt, 2)
    tl = lambda k: vr(T + 4 * k, 4)
    a.mfma32(tl(1), vr(KX_, 4), q32(0), "0"); a.mfma32(tl(3), vr(KX_, 4), q32(1), "0"); a.mfma32(tl(4), vr(KX_ + 4, 4), q32(1), "0")
    a.mfma16(tl(1), vr(KX_ + 8, 2), q16(0)); a.mfma16(tl(3), vr(KX_ + 8, 2), q16(1)); a.mfma16(tl(4), vr(KX_ + 10, 2), q16(1))
    a.waitv(1)
    a.mfma32(tl(0), vr(KM_, 4), q32(0), "0"); a.mfma32(tl(2), vr(KM_, 4), q32(1), "0")
    a.mfma16(tl(0), vr(KM_ + 4, 2), q16(0)); a.mfma16(tl(2), vr(KM_ + 4, 2), q16(1))
    for k in (1, 3, 4, 0, 2): a.i("ds_write_b128 v%d, v[%d:%d] offset:%d", VSP, T + 4 * k, T + 4 * k + 3, 1024 * k)
    a.waitl(0); a.barrier()
    a.i("s_cmp_ge_u32 s20, 2"); a.i("s_cbranch_scc1 Lqa_next")
    a.i("v_add_u32 v3, %d, v2", SP)
    a.i("s_mul_i32 s32, s24, %d", L.PX_S); a.i("s_add_u32 s32, s32, s30"); a.i("s_mul_i32 s33, s24, %d", L.PM_S)
    a.i("s_cmp_eq_u32 s20, 1"); a.i("s_cbranch_scc1 Lqa_rt1")
    R, S_, M, TT, PO = 8, 64, 80, 81, 84
    def finish(rt):
        tiles = (0, 1) if rt == 0 else (2, 3, 4)
        n = 4 * len(tiles)
        for w in range(4):
            for k, tile in enumerate(tiles):
                r = R + (w * len(tiles) + k) * 4
                a.i("ds_read_b128 v[%d:%d], v3 offset:%d", r, r + 3, w * 5120 + tile * 1024)
        a.waitl(0)
        for k in range(n):
            a.i("v_add_f32 v%d, v%d, v%d", S_ + k, R + k, R + n + k); a.i("v_add_f32 v%d, v%d, v%d", R + k, R + 2 * n + k, R + 3 * n + k)
        for k in range(n): a.i("v_add_f32 v%d, v%d, v%d", S_ + k, S_ + k, R + k)
        set_exec(a, 0xffffffff, 0)
        for k in range(4): a.i("v_mov_b32 v%d, v%d", S_ + k, NEG)
        full_exec(a)
        for r in range(4): a.i("v_cndmask_b32 v%d, v%d, v%d, s[%d:%d]", S_ + n - 4 + r, NEG, S_ + n - 4 + r, 44 + 2 * r, 45 + 2 * r)
        softmax_rows(a, S_, n, M, TT, 40)
        x0 = S_ + 4
        a.cvtpk(PO, x0, x0 + 1); a.cvtpk(PO + 2, x0 + 2, x0 + 3)
        if rt == 0:
            a.i("v_mov_b32 v%d, 0", PO + 1); a.i("v_mov_b32 v%d, 0", PO + 3)
        else:
            a.cvtpk(PO + 1, x0 + 4, x0 + 5); a.cvtpk(PO + 3, x0 + 6, x0 + 7)
        a.cvtpk(PO + 4, S_, S_ + 1); a.cvtpk(PO + 5, S_ + 2, S_ + 3)
        a.i("buffer_store_dwordx4 v[%d:%d], v2, s[4:7], s32 offen sc1", PO, PO + 3)
        set_exec(a, 0, 0xffffffff)
        a.i("buffer_store_dwordx2 v[%d:%d], v%d, s[4:7], s33 offen sc1", PO + 4, PO + 5, VPM)
        full_exec(a)
    finish(0)
    a.i("s_branch Lqa_next")
    a.label("Lqa_rt1")
    finish(1)
    a.label("Lqa_next")
    a.i("s_add_u32 s24, s24, 1"); a.i("s_cmp_lt_u32 s24, 64"); a.i("s_cbranch_scc1 Lqa_loop")
    final_flag(a, 31, VZ, 6)
    stamp(a, 2)
    a.i("s_branch L_exit")
```

```python
from kcommon import *
from kproj import top_sync, final_flag
UROW = 1312; UBUF = 16 * UROW

def load_stationary_wo(a):
    G, Ld, TB, STG = 8, 9, 14, 24
    a.i("v_lshlrev_b32 v%d, 4, v0", G)
    for j in range(5):
        a.i("v_add_u32 v3, %d, v0", 256 * j)
        a.divmod_const(4, 5, 3, 80, 1280)
        a.vmul(Ld + j, UROW, 4); a.i("v_lshl_add_u32 v%d, v5, 4, v%d", Ld + j, Ld + j)
    a.i("v_and_b32 v3, 15, v1"); a.i("v_lshrrev_b32 v4, 4, v1")
    a.i("v_lshrrev_b32 v5, 2, v3"); a.i("v_lshl_add_u32 v5, v4, 2, v5")
    a.vmul(TB, UROW, 5)
    a.i("v_and_b32 v3, 3, v3"); a.i("v_lshl_add_u32 v%d, v3, 3, v%d", TB, TB)
    a.i("s_mul_i32 s26, s20, 320"); a.i("v_add_u32 v%d, s26, v%d", TB, TB)
    a.i("s_mul_i32 s25, s21, 245760")
    def issue(T):
        r = STG + 20 * (T % 3)
        for j in range(5):
            a.i("buffer_load_dwordx4 v[%d:%d], v%d, s[8:11], s25 offen", r + 4 * j, r + 4 * j + 3, G)
            a.i("s_add_u32 s25, s25, 4096")
    for T in range(3): issue(T)
    for T in range(12):
        r = STG + 20 * (T % 3); b = (T & 1) * UBUF
        a.waitv(min(10, 5 * (11 - T)))
        for j in range(5):
            a.i("ds_write_b128 v%d, v[%d:%d] offset:%d", Ld + j, r + 4 * j, r + 4 * j + 3, b)
        a.waitl(0)
        if T + 3 < 12: issue(T + 3)
        a.barrier()
        wp, t = T // 3, T % 3
        ks, hf = (wp, t) if t < 2 else (4 + (wp >> 1), wp & 1)
        for ct in range(10):
            d = (ct * 6 + ks) * 4 + 2 * hf
            a.i("ds_read_b64_tr_b16 a[%d:%d], v%d offset:%d", d, d + 1, TB, b + 32 * ct)
    a.waitl(0)
    a.barrier()

EXP = ""
def role_u(a, nxt):
    stamp(a, 0)
    load_stationary_wo(a)
    stamp(a, 1)
    AF, ACC0, ACC1, O0, O1, VB, VZ, VT, VP = 24, 72, 112, 152, 172, 192, 193, 194, 195
    a.i("v_mov_b32 v%d, 0", VZ)
    a.i("s_lshl_b32 s31, s21, 7"); a.i("s_add_u32 s33, s31, %d", L.F_PROGV); a.i("s_add_u32 s31, s31, %d", L.F_PROGU)
    a.i("s_mov_b32 s38, s33")
    a.i("s_mul_i32 s34, s21, 12288"); a.i("s_mul_i32 s33, s20, 3072"); a.i("s_add_u32 s34, s34, s33")
    a.i("s_add_u32 s34, s34, 0x%x", L.VX)
    a.i("s_mul_i32 s39, s20, 3072")
    a.i("s_mul_i32 s30, s21, 40960"); a.i("s_mul_i32 s33, s20, 10240"); a.i("s_add_u32 s30, s30, s33")
    a.i("s_add_u32 s30, s30, 0x%x", L.UB)
    def dma(sg, sl):
        a.i("s_mov_b32 m0, s%d", sl); a.i("s_nop 0")
        for p in range(3):
            a.i("buffer_load_dwordx4 v2, s[4:7], s%d offen offset:%d sc1 lds", sg, p * 1024)
    a.i("s_mov_b32 s33, 1")
    wait_ge(a, VP, VZ, "s38", "s33")
    dma(34, 39)
    a.i("s_mov_b32 s24, 0")
    a.i("v_mov_b32 v%d, 0", VP)
    a.waitv(0)
    a.label("Lu_loop")
    top_sync(a, 10, 31, VZ, VT)
    ok = a.uid("Lu_ok")
    a.i("s_add_u32 s32, s24, 2"); a.i("s_min_u32 s33, s32, 64")
    a.i("v_readfirstlane_b32 s35, v%d", VP)
    a.i("s_cmp_ge_u32 s35, s33"); a.i("s_cbranch_scc1 %s", ok)
    wait_ge(a, VP, VZ, "s38", "s33")
    a.label(ok)
    a.i("buffer_load_dword v%d, v%d, s[4:7], s38 offen sc1", VP, VZ)
    a.i("s_add_u32 s32, s24, 1"); a.i("s_min_u32 s33, s32, 63")
    a.i("s_mul_i32 s35, s33, %d", L.KX_S); a.i("s_add_u32 s35, s35, s34")
    a.i("s_and_b32 s32, s32, 1"); a.i("s_mul_i32 s37, s32, 12288"); a.i("s_add_u32 s37, s37, s39")
    dma(35, 37)
    a.i("s_and_b32 s32, s24, 1"); a.i("s_mul_i32 s32, s32, 12288")
    a.i("v_add_u32 v%d, s32, v2", VB)
    for ks in range(6):
        for jt in range(2):
            r = AF + (jt * 6 + ks) * 4
            if ks < 4:
                a.i("ds_read_b128 v[%d:%d], v%d offset:%d", r, r + 3, VB, ks * 3072 + jt * 1024)
            else:
                for hf in range(2):
                    a.i("ds_read_b64 v[%d:%d], v%d offset:%d", r + 2 * hf, r + 2 * hf + 1, VB, (2 * (ks - 4) + hf) * 3072 + 2048 + jt * 8)
    a.i("s_mul_i32 s32, s24, %d", 0 if "stride0" in EXP else L.UB_S); a.i("s_add_u32 s32, s32, s30")
    a.i("s_add_u32 s35, s32, 4096"); a.i("s_add_u32 s36, s32, 8192")
    def out_tile(acc, c5, o, ct):
        A_, B_ = acc + (0 * 5 + c5) * 4, acc + (1 * 5 + c5) * 4
        a.cvtpk(o, A_, A_ + 1); a.cvtpk(o + 1, B_, B_ + 1); a.cvtpk(o + 2, A_ + 2, A_ + 3); a.cvtpk(o + 3, B_ + 2, B_ + 3)
        a.i("buffer_store_dwordx4 v[%d:%d], v2, s[4:7], s%d offen offset:%d %s", o, o + 3, (32, 35, 36)[ct // 4], (ct % 4) * 1024, "" if "plain" in EXP else "sc1")
    nread = [2, 4, 6, 8, 12, 16]
    for grp in range(2):
        acc = ACC0 if grp == 0 else ACC1
        for ks in range(6):
            if grp == 0: a.waitl(min(15, 16 - nread[ks]))
            for c5 in range(5):
                ct = grp * 5 + c5
                for jt in range(2):
                    a.mfma32(vr(acc + (jt * 5 + c5) * 4, 4), vr(AF + (jt * 6 + ks) * 4, 4), ar((ct * 6 + ks) * 4, 4), "0" if ks == 0 else None)
            if grp == 1 and ks >= 1: out_tile(ACC0, ks - 1, O0 + 4 * (ks - 1), ks - 1)
    for c5 in range(5): out_tile(ACC1, c5, O1 + 4 * c5, 5 + c5)
    a.i("s_add_u32 s24, s24, 1"); a.i("s_cmp_lt_u32 s24, 64"); a.i("s_cbranch_scc1 Lu_loop")
    final_flag(a, 31, VZ, VT)
    stamp(a, 2)
    a.i("s_branch %s", nxt)
```

```python
from kcommon import *
from kproj import *
from kchain import set_exec, full_exec, rowmax

NBX = 64
def role_bx(a):
    stamp(a, 3)
    UU, ZM_, PXR, PMR, ACC_, XR, VF1, VF2, VT, VRED, VX, VST, VZ = 8, 72, 88, 152, 168, 184, 188, 189, 190, 191, 192, 193, 194
    a.ptr(16, L.A_X); a.i("s_waitcnt lgkmcnt(0)"); a.srd_tail(16, L.SZ_X)
    a.i("v_mov_b32 v%d, 0", VZ)
    a.i("v_and_b32 v3, 7, v1"); a.i("s_lshl_b32 s26, s20, 3"); a.i("v_add_u32 v3, s26, v3"); a.i("v_lshlrev_b32 v3, 7, v3")
    a.i("v_add_u32 v%d, %d, v3", VF2, L.F_PROGP)
    a.i("v_add_u32 v%d, %d, v3", VF1, L.F_PROGU)
    a.i("s_lshl_b32 s26, s20, 12"); a.i("v_add_u32 v%d, s26, v2", VRED)
    a.i("v_and_b32 v3, 15, v1"); a.i("v_lshrrev_b32 v4, 4, v1")
    a.vmul(VX, 1280, 3); a.i("v_lshl_add_u32 v%d, v4, 3, v%d", VX, VX)
    a.i("v_lshlrev_b32 v%d, 3, v3", VST)
    a.i("s_mov_b32 s25, s21")
    a.label("Lbx_loop")
    a.i("s_cmp_ge_u32 s25, 1280"); a.i("s_cbranch_scc1 L_exit")
    a.i("s_mul_hi_u32 s24, s25, 0x%x", -(-(1 << 32) // 20)); a.i("s_mul_i32 s26, s24, 20"); a.i("s_sub_u32 s27, s25, s26")
    a.i("s_add_u32 s28, s24, 1")
    a.i("s_mul_i32 s26, s20, 20"); a.i("s_add_u32 s26, s26, s27"); a.i("s_lshl_b32 s26, s26, 7"); a.i("s_add_u32 s26, s26, %d", L.F_PROGZ)
    a.i("v_mov_b32 v5, s26"); a.i("v_cmp_gt_u32 vcc, 8, v1"); a.i("v_cndmask_b32 v5, v5, v%d, vcc", VF1)
    wait_ge(a, 6, 5, "0", "s28")
    a.i("s_mul_i32 s30, s24, %d", L.UB_S); a.i("s_mul_i32 s26, s20, %d", 8 * 40960); a.i("s_add_u32 s30, s30, s26")
    a.i("s_lshl_b32 s26, s27, 11"); a.i("s_add_u32 s30, s30, s26"); a.i("s_add_u32 s30, s30, 0x%x", L.UB)
    for h in range(8):
        for ct in range(2):
            r = UU + (h * 2 + ct) * 4
            a.i("buffer_load_dwordx4 v[%d:%d], v2, s[4:7], s30 offen offset:%d sc1", r, r + 3, ct * 1024)
        a.i("s_add_u32 s30, s30, 40960")
    a.i("s_mul_i32 s30, s24, %d", L.ZM_S); a.i("s_mul_i32 s26, s20, %d", 2 * 40960); a.i("s_add_u32 s30, s30, s26")
    a.i("s_lshl_b32 s26, s27, 11"); a.i("s_add_u32 s30, s30, s26"); a.i("s_add_u32 s30, s30, 0x%x", L.ZM)
    for q in range(2):
        for ct in range(2):
            r = ZM_ + (q * 2 + ct) * 4
            a.i("buffer_load_dwordx4 v[%d:%d], v2, s[4:7], s30 offen offset:%d sc1", r, r + 3, ct * 1024)
        a.i("s_add_u32 s30, s30, 40960")
    a.i("s_lshl_b32 s30, s24, 5"); a.i("s_and_b32 s26, s20, 1"); a.i("s_lshl_b32 s26, s26, 4"); a.i("s_add_u32 s30, s30, s26")
    a.i("s_mul_i32 s30, s30, 1280"); a.i("s_lshl_b32 s26, s27, 6"); a.i("s_add_u32 s30, s30, s26")
    for ct in range(2):
        a.i("buffer_load_dwordx2 v[%d:%d], v%d, s[16:19], s30 offen offset:%d", XR + 2 * ct, XR + 2 * ct + 1, VX, 32 * ct)
    wait_ge(a, 6, VF2, "0", "s28")
    a.i("s_mul_i32 s30, s24, %d", L.PX_S); a.i("s_lshl_b32 s26, s20, 14"); a.i("s_add_u32 s30, s30, s26"); a.i("s_add_u32 s30, s30, 0x%x", L.PX)
    for h in range(8):
        for rt in range(2):
            r = PXR + (h * 2 + rt) * 4
            a.i("buffer_load_dwordx4 v[%d:%d], v2, s[4:7], s30 offen offset:%d sc1", r, r + 3, (h & 1) * 2048 + rt * 1024)
        if h & 1: a.i("s_add_u32 s30, s30, 4096")
    a.i("s_mul_i32 s30, s24, %d", L.PM_S); a.i("s_lshl_b32 s26, s20, 11"); a.i("s_add_u32 s30, s30, s26"); a.i("s_add_u32 s30, s30, 0x%x", L.PM)
    a.i("s_add_u32 s31, s30, 8192")
    for q in range(2):
        for rt in range(2):
            r = PMR + (q * 2 + rt) * 4
            a.i("buffer_load_dwordx4 v[%d:%d], v2, s[4:7], s%d offen offset:%d sc1", r, r + 3, 30 + rt, q * 1024)
    for h in range(8):
        a.waitv(min(63, 2 * (7 - h) + 4))
        for ct in range(2):
            for rt in range(2):
                a.mfma32(vr(ACC_ + (ct * 2 + rt) * 4, 4), vr(UU + (h * 2 + ct) * 4, 4), vr(PXR + (h * 2 + rt) * 4, 4), "0" if h == 0 else None)
    a.waitv(0)
    for q in range(2):
        for ct in range(2):
            for rt in range(2):
                a.mfma32(vr(ACC_ + (ct * 2 + rt) * 4, 4), vr(ZM_ + (q * 2 + ct) * 4, 4), vr(PMR + (q * 2 + rt) * 4, 4))
    for k in range(4): a.i("ds_write_b128 v%d, v[%d:%d] offset:%d", VRED, ACC_ + 4 * k, ACC_ + 4 * k + 3, 1024 * k)
    a.waitl(0); a.barrier()
    a.i("s_cmp_ge_u32 s20, 2"); a.i("s_cbranch_scc1 Lbx_fin")
    a.i("s_lshl_b32 s26, s20, 10"); a.i("v_add_u32 v3, s26, v2")
    R = 8
    for ct in range(2):
        for w in range(4):
            r = R + (ct * 4 + w) * 4
            a.i("ds_read_b128 v[%d:%d], v3 offset:%d", r, r + 3, w * 4096 + ct * 2048)
    a.waitl(0)
    Hf = 48
    for ct in range(2):
        b = R + ct * 16
        for r in range(4):
            a.i("v_add_f32 v%d, v%d, v%d", b + r, b + r, b + 4 + r); a.i("v_add_f32 v%d, v%d, v%d", b + 8 + r, b + 8 + r, b + 12 + r)
        for r in range(4): a.i("v_add_f32 v%d, v%d, v%d", b + r, b + r, b + 8 + r)
        for d in range(2):
            x = XR + 2 * ct + d
            a.i("v_lshlrev_b32 v5, 16, v%d", x); a.i("v_and_b32 v6, 0xffff0000, v%d", x)
            a.i("v_add_f32 v%d, v%d, v5", b + 2 * d, b + 2 * d); a.i("v_add_f32 v%d, v%d, v6", b + 2 * d + 1, b + 2 * d + 1)
    HO = 56
    for ct in range(2):
        b = R + ct * 16
        a.cvtpk(HO + 2 * ct, b, b + 1); a.cvtpk(HO + 2 * ct + 1, b + 2, b + 3)
    a.i("s_mul_i32 s30, s24, %d", L.HB_S); a.i("s_mul_i32 s26, s20, 20480"); a.i("s_add_u32 s30, s30, s26")
    a.i("s_lshl_b32 s26, s27, 10"); a.i("s_add_u32 s30, s30, s26"); a.i("s_add_u32 s30, s30, 0x%x", L.HB)
    a.i("buffer_store_dwordx4 v[%d:%d], v2, s[4:7], s30 offen sc1", HO, HO + 3)
    for d in range(4):
        a.i("v_lshlrev_b32 v%d, 16, v%d", Hf + 2 * d, HO + d); a.i("v_and_b32 v%d, 0xffff0000, v%d", Hf + 2 * d + 1, HO + d)
    S1, S2 = 60, 61
    a.i("v_add_f32 v%d, v%d, v%d", S1, Hf, Hf + 1); a.i("v_mul_f32 v%d, v%d, v%d", S2, Hf, Hf)
    for k in range(2, 8): a.i("v_add_f32 v%d, v%d, v%d", S1, S1, Hf + k)
    for k in range(1, 8): a.i("v_fmac_f32 v%d, v%d, v%d", S2, Hf + k, Hf + k)
    rowmax(a, S1, 62, "v_add_f32"); rowmax(a, S2, 62, "v_add_f32")
    a.i("s_mul_i32 s30, s24, %d", L.ST_S); a.i("s_mul_i32 s26, s20, 2560"); a.i("s_add_u32 s30, s30, s26")
    a.i("s_lshl_b32 s26, s27, 7"); a.i("s_add_u32 s30, s30, s26"); a.i("s_add_u32 s30, s30, 0x%x", L.ST)
    a.i("s_mov_b64 exec, 0xffff")
    a.i("buffer_store_dwordx2 v[%d:%d], v%d, s[4:7], s30 offen sc1", S1, S2, VST)
    full_exec(a)
    a.waitv(0)
    a.label("Lbx_fin")
    a.barrier()
    lab = a.uid("Lbx_nf")
    a.i("s_cmp_lg_u32 s20, 0"); a.i("s_cbranch_scc1 %s", lab)
    a.i("s_lshl_b32 s30, s24, 7"); a.i("s_lshl_b32 s26, s27, 2"); a.i("s_add_u32 s30, s30, s26"); a.i("s_add_u32 s30, s30, %d", L.F_FLAGH)
    a.i("v_mov_b32 v6, 1"); a.i("s_mov_b64 exec, 1")
    a.i("buffer_store_dword v6, v%d, s[4:7], s30 offen sc1", VZ); full_exec(a)
    a.label(lab)
    a.i("s_add_u32 s25, s25, %d", NBX); a.i("s_branch Lbx_loop")

def role_f1(a):
    stamp(a, 4)
    load_stationary_192(a, ffn=True)
    CS, ONE, VB, VZ, VFH, VSTA, VA4, VA2, MEAN, RSTD, STR = 96, 108, 92, 93, 94, 95, 112, 113, 114, 116, 120
    for k in range(4): a.i("v_mov_b32 v%d, 0x3f803f80", ONE + k)
    for t in range(3):
        for kk in range(20): a.mfma32(vr(CS + 4 * t, 4), ar((t * 20 + kk) * 4, 4), vr(ONE, 4), "0" if kk == 0 else None)
    a.i("v_mov_b32 v%d, 0", VZ)
    a.i("v_min_u32 v3, 19, v1"); a.i("v_lshlrev_b32 v%d, 2, v3", VFH)
    a.i("v_and_b32 v3, 15, v1"); a.i("v_lshrrev_b32 v4, 4, v1")
    a.vmul(VSTA, 5 * 128, 4); a.i("v_lshl_add_u32 v%d, v3, 3, v%d", VSTA, VSTA)
    a.i("v_lshrrev_b32 v5, 1, v4"); a.vmul(5, 49152, 5); a.i("v_lshl_add_u32 v5, v3, 4, v5"); a.i("v_and_b32 v6, 1, v4")
    a.i("s_mul_i32 s26, s21, 3072"); a.i("s_add_u32 s26, s26, 0x%x", L.ACT)
    a.i("s_lshr_b32 s27, s20, 1"); a.i("s_lshl_b32 s27, s27, 10"); a.i("s_and_b32 s28, s20, 1"); a.i("s_lshl_b32 s28, s28, 9")
    a.i("s_add_u32 s27, s27, s28"); a.i("s_add_u32 s27, s27, s26")
    a.i("v_lshl_add_u32 v%d, v6, 8, v5", VA4); a.i("v_add_u32 v%d, s27, v%d", VA4, VA4)
    a.i("s_lshl_b32 s27, s20, 8"); a.i("s_add_u32 s27, s27, s26"); a.i("s_add_u32 s27, s27, 2048")
    a.i("v_lshl_add_u32 v%d, v6, 3, v5", VA2); a.i("v_add_u32 v%d, s27, v%d", VA2, VA2)
    a.i("s_lshl_b32 s31, s21, 7"); a.i("s_lshl_b32 s26, s22, 11"); a.i("s_add_u32 s31, s31, s26"); a.i("s_add_u32 s31, s31, %d", L.F_PROGA)
    a.i("s_mul_i32 s34, s20, 10240"); a.i("s_mov_b32 s37, s34")
    a.i("v_mov_b32 v%d, v2", VB)
    a.i("s_mov_b32 s40, 0xbfb8aa3b")
    a.i("s_mov_b32 s41, 1")
    a.i("s_mov_b32 s24, s22")
    a.label("Lf1_loop")
    a.i("s_lshl_b32 s32, s24, 7"); a.i("s_add_u32 s32, s32, %d", L.F_FLAGH)
    wait_ge(a, 6, VFH, "s32", "s41")
    a.i("s_mul_i32 s35, s24, %d", L.HB_S); a.i("s_add_u32 s35, s35, s34"); a.i("s_add_u32 s35, s35, 0x%x", L.HB)
    for p in range(10): dma_piece(a, p, 35, 37)
    a.i("s_mul_i32 s32, s24, %d", L.ST_S); a.i("s_add_u32 s32, s32, 0x%x", L.ST); a.i("s_add_u32 s33, s32, 2560")
    for rt in range(2):
        for j in range(5):
            r = STR + (rt * 5 + j) * 2
            a.i("buffer_load_dwordx2 v[%d:%d], v%d, s[4:7], s%d offen offset:%d sc1", r, r + 1, VSTA, 32 + rt, j * 128)
    a.waitv(0); a.barrier()
    for rt in range(2):
        b = STR + rt * 10
        for j in range(1, 5):
            a.i("v_add_f32 v%d, v%d, v%d", b, b, b + 2 * j); a.i("v_add_f32 v%d, v%d, v%d", b + 1, b + 1, b + 2 * j + 1)
        rowmax(a, b, 6, "v_add_f32"); rowmax(a, b + 1, 6, "v_add_f32")
        a.i("v_mul_f32 v%d, 0x3acccccd, v%d", MEAN + rt, b)
        a.i("v_mul_f32 v%d, 0x3acccccd, v%d", b + 1, b + 1)
        a.i("v_fma_f32 v%d, -v%d, v%d, v%d", b + 1, MEAN + rt, MEAN + rt, b + 1)
        a.i("v_max_f32 v%d, 0, v%d", b + 1, b + 1)
        a.i("v_add_f32 v%d, 0x3727c5ac, v%d", b + 1, b + 1)
        a.i("v_rsq_f32 v%d, v%d", RSTD + rt, b + 1)
    gemm_core(a, VB)
    for t in range(3):
        for rt in range(2):
            d = ACC + (t * 2 + rt) * 4
            for r in range(4): a.i("v_fma_f32 v%d, -v%d, v%d, v%d", d + r, MEAN + rt, CS + 4 * t + r, d + r)
            for r in range(4): a.i("v_mul_f32 v%d, v%d, v%d", d + r, d + r, RSTD + rt)
    AO, E = 24, 40
    for t in range(3):
        g, u = ACC + (t * 2) * 4, ACC + (t * 2 + 1) * 4
        for r in range(4): a.i("v_permlane32_swap_b32 v%d, v%d", g + r, u + r)
        for r in range(4): a.i("v_mul_f32 v%d, s40, v%d", E + r, g + r)
        for r in range(4): a.i("v_exp_f32 v%d, v%d", E + r, E + r)
        for r in range(4): a.i("v_add_f32 v%d, 1.0, v%d", E + r, E + r)
        for r in range(4): a.i("v_rcp_f32 v%d, v%d", E + r, E + r)
        for r in range(4): a.i("v_mul_f32 v%d, v%d, v%d", g + r, g + r, u + r)
        for r in range(4): a.i("v_mul_f32 v%d, v%d, v%d", g + r, g + r, E + r)
        a.cvtpk(AO + 2 * t, g, g + 1); a.cvtpk(AO + 2 * t + 1, g + 2, g + 3)
    a.i("s_mul_i32 s32, s24, %d", L.ACT_S)
    a.i("buffer_store_dwordx4 v[%d:%d], v%d, s[4:7], s32 offen sc1", AO, AO + 3, VA4)
    a.i("buffer_store_dwordx2 v[%d:%d], v%d, s[4:7], s32 offen sc1", AO + 4, AO + 5, VA2)
    a.waitv(0); a.barrier()
    lab = a.uid("Lf1_nf")
    a.i("s_cmp_lg_u32 s20, 0"); a.i("s_cbranch_scc1 %s", lab)
    a.i("s_add_u32 s32, s24, 1"); a.i("v_mov_b32 v6, s32"); a.i("s_mov_b64 exec, 1")
    a.i("buffer_store_dword v6, v%d, s[4:7], s31 offen sc1", VZ); full_exec(a)
    a.label(lab)
    a.i("s_add_u32 s24, s24, 2"); a.i("s_cmp_lt_u32 s24, 64"); a.i("s_cbranch_scc1 Lf1_loop")
    stamp(a, 5)
    a.i("s_branch L_exit")

F2ROW = 160; F2BUF = 96 * F2ROW
def load_stationary_wd(a):
    G, Ld, TB0, TB2, STG = 8, 9, 10, 11, 24
    GG, LL = 96, 112
    for j in range(15):
        a.i("v_add_u32 v3, %d, v1", 64 * j)
        a.divmod_const(4, 5, 3, 10, 960)
        a.vmul(GG + j, 1280, 4); a.i("v_lshl_add_u32 v%d, v5, 4, v%d", GG + j, GG + j)
        a.vmul(LL + j, F2ROW, 4); a.i("v_lshl_add_u32 v%d, v5, 4, v%d", LL + j, LL + j)
    a.i("s_mul_i32 s26, s20, %d", F2BUF)
    for j in range(15): a.i("v_add_u32 v%d, s26, v%d", LL + j, LL + j)
    a.i("v_and_b32 v3, 15, v1"); a.i("v_lshrrev_b32 v4, 4, v1"); a.i("v_lshrrev_b32 v5, 2, v3")
    a.i("v_lshrrev_b32 v6, 1, v4"); a.vmul(6, 24, 6); a.i("v_add_u32 v6, v6, v5")
    a.i("v_and_b32 v7, 1, v4"); a.i("v_lshl_add_u32 v6, v7, 2, v6"); a.vmul(TB0, F2ROW, 6)
    a.vmul(6, 24, 4); a.i("v_add_u32 v6, v6, v5"); a.i("v_add_u32 v6, 16, v6"); a.vmul(TB2, F2ROW, 6)
    a.i("v_and_b32 v3, 3, v3"); a.i("v_lshlrev_b32 v3, 3, v3"); a.i("v_add_u32 v3, s26, v3")
    a.i("v_add_u32 v%d, v3, v%d", TB0, TB0); a.i("v_add_u32 v%d, v3, v%d", TB2, TB2)
    a.i("s_mul_i32 s25, s20, %d", 384 * 1280); a.i("s_mul_i32 s26, s21, 160"); a.i("s_add_u32 s25, s25, s26")
    for n in range(4):
        for j in range(15):
            a.i("buffer_load_dwordx4 v[%d:%d], v%d, s[8:11], s25 offen", STG + 4 * j, STG + 4 * j + 3, GG + j)
        a.i("s_add_u32 s25, s25, %d", 96 * 1280)
        for j in range(15):
            a.waitv(14 - j)
            a.i("ds_write_b128 v%d, v[%d:%d]", LL + j, STG + 4 * j, STG + 4 * j + 3)
        a.waitl(0)
        for f in range(3):
            for ct in range(5):
                for hf in range(2):
                    d = (ct * 12 + n * 3 + f) * 4 + 2 * hf
                    if f < 2: a.i("ds_read_b64_tr_b16 a[%d:%d], v%d offset:%d", d, d + 1, TB0, (48 * f + 8 * hf) * F2ROW + 32 * ct)
                    else: a.i("ds_read_b64_tr_b16 a[%d:%d], v%d offset:%d", d, d + 1, TB2, 4 * hf * F2ROW + 32 * ct)
        a.waitl(0)
    a.barrier()

def role_f2(a):
    stamp(a, 4)
    load_stationary_wd(a)
    AF, ACC_, HR, VF, VRED, VH, VO = 8, 104, 144, 152, 153, 154, 155
    a.ptr(16, L.A_OUT); a.i("s_waitcnt lgkmcnt(0)"); a.srd_tail(16, L.SZ_X)
    a.i("v_and_b32 v3, 3, v1"); a.i("s_lshl_b32 s26, s20, 2"); a.i("v_add_u32 v3, s26, v3"); a.i("v_lshlrev_b32 v3, 7, v3")
    a.i("s_lshl_b32 s26, s22, 11"); a.i("s_add_u32 s26, s26, %d", L.F_PROGA); a.i("v_add_u32 v%d, s26, v3", VF)
    a.i("s_mul_i32 s26, s20, 10240"); a.i("v_add_u32 v%d, s26, v2", VRED)
    a.i("v_and_b32 v3, 15, v1"); a.i("v_lshrrev_b32 v4, 4, v1")
    a.vmul(VO, 1280, 3); a.i("v_lshl_add_u32 v%d, v4, 3, v%d", VO, VO)
    a.i("s_lshr_b32 s40, s20, 1"); a.i("s_and_b32 s41, s20, 1")
    for k in range(3):
        a.i("s_cmp_eq_u32 s41, 0"); a.i("s_cselect_b32 s%d, %d, %d", 42 + k, k, min(3 + k, 4))
    a.i("s_mov_b32 s24, s22")
    a.label("Lf2_loop")
    a.i("s_add_u32 s28, s24, 1")
    wait_ge(a, 6, VF, "0", "s28")
    a.i("s_mul_i32 s30, s24, %d", L.ACT_S); a.i("s_mul_i32 s26, s20, 12288"); a.i("s_add_u32 s30, s30, s26"); a.i("s_add_u32 s30, s30, 0x%x", L.ACT)
    a.i("s_add_u32 s31, s30, 49152")
    for kk in range(12):
        for rt in range(2):
            r = AF + (kk * 2 + rt) * 4
            a.i("buffer_load_dwordx4 v[%d:%d], v2, s[4:7], s%d offen offset:%d sc1", r, r + 3, 30 + rt, (kk % 4) * 1024)
        if kk % 4 == 3 and kk < 11: a.i("s_add_u32 s30, s30, 4096"); a.i("s_add_u32 s31, s31, 4096")
    a.i("s_mul_i32 s32, s24, %d", L.HB_S); a.i("s_mul_i32 s26, s40, 20480"); a.i("s_add_u32 s32, s32, s26"); a.i("s_add_u32 s32, s32, 0x%x", L.HB)
    for k in range(3):
        a.i("s_mul_i32 s33, s21, 5"); a.i("s_add_u32 s33, s33, s%d", 42 + k)
        a.i("s_lshr_b32 s34, s33, 1"); a.i("s_lshl_b32 s34, s34, 10"); a.i("s_and_b32 s33, s33, 1"); a.i("s_lshl_b32 s33, s33, 3")
        a.i("s_add_u32 s34, s34, s33"); a.i("s_add_u32 s34, s34, s32")
        a.i("buffer_load_dwordx2 v[%d:%d], v2, s[4:7], s34 offen sc1", HR + 2 * k, HR + 2 * k + 1)
    for kk in range(12):
        a.waitv(2 * (11 - kk) + 3)
        for ct in range(5):
            for rt in range(2):
                a.mfma32(vr(ACC_ + (ct * 2 + rt) * 4, 4), ar((ct * 12 + kk) * 4, 4), vr(AF + (kk * 2 + rt) * 4, 4), "0" if kk == 0 else None)
    for k in range(10): a.i("ds_write_b128 v%d, v[%d:%d] offset:%d", VRED, ACC_ + 4 * k, ACC_ + 4 * k + 3, 1024 * k)
    a.waitl(0); a.waitv(0); a.barrier()
    a.i("s_lshl_b32 s32, s24, 5"); a.i("s_lshl_b32 s26, s40, 4"); a.i("s_add_u32 s32, s32, s26"); a.i("s_mul_i32 s32, s32, 1280")
    a.i("s_mul_i32 s26, s21, 160"); a.i("s_add_u32 s32, s32, s26")
    R = 8
    for k in range(3):
        a.i("s_lshl_b32 s33, s%d, 1", 42 + k); a.i("s_add_u32 s33, s33, s40"); a.i("s_lshl_b32 s33, s33, 10"); a.i("v_add_u32 v3, s33, v2")
        for w in range(4): a.i("ds_read_b128 v[%d:%d], v3 offset:%d", R + (k * 4 + w) * 4, R + (k * 4 + w) * 4 + 3, w * 10240)
    a.waitl(0)
    for k in range(3):
        b = R + k * 16
        for r in range(4):
            a.i("v_add_f32 v%d, v%d, v%d", b + r, b + r, b + 4 + r); a.i("v_add_f32 v%d, v%d, v%d", b + 8 + r, b + 8 + r, b + 12 + r)
        for r in range(4): a.i("v_add_f32 v%d, v%d, v%d", b + r, b + r, b + 8 + r)
        for d in range(2):
            x = HR + 2 * k + d
            a.i("v_lshlrev_b32 v5, 16, v%d", x); a.i("v_and_b32 v6, 0xffff0000, v%d", x)
            a.i("v_add_f32 v%d, v%d, v5", b + 2 * d, b + 2 * d); a.i("v_add_f32 v%d, v%d, v6", b + 2 * d + 1, b + 2 * d + 1)
        a.cvtpk(b + 4, b, b + 1); a.cvtpk(b + 5, b + 2, b + 3)
        a.i("s_lshl_b32 s33, s%d, 5", 42 + k); a.i("s_add_u32 s33, s33, s32")
        a.i("buffer_store_dwordx2 v[%d:%d], v%d, s[16:19], s33 offen", b + 4, b + 5, VO)
    a.barrier()
    a.i("s_add_u32 s24, s24, 2"); a.i("s_cmp_lt_u32 s24, 64"); a.i("s_cbranch_scc1 Lf2_loop")
    a.waitv(0)
    stamp(a, 5)
    a.i("s_branch L_exit")
```

```python
S, NSEG, H, DH, DM, FF = 2048, 64, 32, 192, 640, 1536
WS_BYTES = 256 << 20
F_PROGK, F_PROGV, F_PROGU, F_PROGP, F_PROGKM, F_PROGZ, F_PROGA = 0, 4096, 8192, 12288, 16384, 20480, 32768
F_PROGA2 = 34816
F_FLAGH = 36864
F_END = 36864 + 64 * 128
MEM = 0x100000
MEM_S = 4 * 10240
PCH = 0x380000
PCH_S = 32 * 640
PART = 0x4C0000
PART_S = 20 * 4 * 1024
POISON_BEG = MEM + MEM_S
POISON_END = PART + 64 * PART_S
XN = 0xC00000;   XN_S = 40960
HB = 0x1000000;  HB_S = 40960
ST = 0x1300000;  ST_S = 2 * 20 * 128
ACT = 0x1400000; ACT_S = 2 * 48 * 1024
PX = 0x1B00000;  PX_S = 32 * 2048
PM = 0x1F00000;  PM_S = 2 * 8 * 1024
KM = 0x2000000;  KM_S = 32 * 6144
ZM = 0x2D00000;  ZM_S = 8 * 40 * 1024
KX = 0x4200000;  KX_S = 32 * 12288
VX = 0x5B00000
UB = 0x7400000;  UB_S = 32 * 40 * 1024
BB = 0xC500000
BB_W = 40 * 2048
assert UB + 64 * UB_S <= BB and BB + 320 * BB_W <= 0xF000000
assert PART + 64 * PART_S == POISON_END
assert XN + 64 * XN_S <= HB and HB + 64 * HB_S <= ST and ST + 64 * ST_S <= ACT and ACT + 64 * ACT_S <= PX
assert PX + 64 * PX_S <= PM and PM + 64 * PM_S <= KM and KM + 64 * KM_S <= ZM and ZM + 64 * ZM_S <= KX
assert KX + 64 * KX_S <= VX and VX + 64 * KX_S <= UB and UB + 64 * UB_S <= WS_BYTES
A_X, A_MEM0, A_WQ, A_WK, A_WV, A_WO, A_SEG, A_BX, A_WG, A_WU, A_WD, A_OUT, A_DBG, A_WS = [8 * i for i in range(14)]
SZ_X = S * DM * 2; SZ_W = DM * H * DH * 2; SZ_FF = DM * FF * 2; SZ_MEM0 = 8 * DM * 2

def mem_dl(g_a, half, v):
    q, p = v >> 1, v & 1
    return 32 * (g_a >> 1) + 16 * (q & 1) + 8 * (g_a & 1) + 4 * (q >> 1) + 2 * half + p
```

```python
import re, sys
REG = re.compile(r'^(-|abs\(|\|)?([vas])(\d+)\)?\|?$')
RNG = re.compile(r'^(-)?([vas])\[(\d+):(\d+)\]$')
def regs(op):
    op = op.strip()
    m = RNG.match(op)
    if m: return [(m.group(2), i) for i in range(int(m.group(3)), int(m.group(4)) + 1)]
    m = REG.match(op)
    if m: return [(m.group(2), int(m.group(3)))]
    if op == "vcc": return [("s", "vcc")]
    if op == "exec": return [("s", "exec")]
    if op == "m0": return [("s", "m0")]
    return []
TRANS = ("v_exp_f32", "v_log_f32", "v_rcp_f32", "v_rsq_f32", "v_sqrt_f32", "v_sin_f32", "v_cos_f32", "v_rcp_iflag_f32")
class I:
    def __init__(self, line, ln):
        self.ln = ln; self.text = line.strip()
        t = self.text.split(";")[0].strip()
        p = t.split(None, 1)
        self.op = p[0]
        rest = p[1] if len(p) > 1 else ""
        ops = []; cur = ""; d = 0
        for ch in rest:
            if ch in "[(": d += 1
            if ch in "])": d -= 1
            if ch == "," and d == 0: ops.append(cur.strip()); cur = ""
            else: cur += ch
        if cur.strip(): ops.append(cur.strip())
        mods = ""
        if ops:
            last = ops[-1].split()
            ops[-1] = last[0]; mods = " ".join(last[1:])
        self.ops = ops; self.mods = mods
        op = self.op
        self.kind = "other"; self.w = []; self.r = []; self.states = 1
        self.mA = self.mB = self.mC = []; self.passes = 0
        self.dpp = ("row_" in mods or "quad_perm" in mods or "_dpp" in op or "wave_" in mods)
        R = lambda i: regs(ops[i]) if i < len(ops) else []
        if op == "s_nop":
            self.kind = "nop"; self.states = int(ops[0], 0) + 1
        elif op.startswith("v_mfma") or op.startswith("v_smfmac"):
            self.kind = "mfma"; self.w = R(0); self.mA = R(1); self.mB = R(2)
            if op.startswith("v_smfmac"):
                self.mC = R(0); self.idx = R(3); self.r = self.mA + self.mB + self.mC + self.idx
            else:
                self.mC = R(3); self.r = self.mA + self.mB + self.mC
            self.passes = 8 if "32x32" in op else 4
            if "4x4x4" in op: self.passes = 2
        elif op.startswith("v_"):
            self.kind = "valu"
            base = op.replace("_e32", "").replace("_e64", "").replace("_dpp", "").replace("_sdwa", "")
            self.base = base
            if base.startswith("v_cmp"):
                self.w = R(0); self.r = sum((R(i) for i in range(1, len(ops))), [])
                if base.startswith("v_cmpx"): self.w = self.w + [("s", "exec")]
            elif base in ("v_permlane32_swap_b32", "v_permlane16_swap_b32", "v_swap_b32"):
                self.w = R(0) + R(1); self.r = R(0) + R(1)
            elif base in ("v_add_co_u32", "v_sub_co_u32", "v_addc_co_u32", "v_subb_co_u32"):
                self.w = R(0) + R(1); self.r = sum((R(i) for i in range(2, len(ops))), [])
            elif base in ("v_fmac_f32", "v_dot2c_f32_bf16", "v_writelane_b32", "v_pk_fmac_f16"):
                self.w = R(0); self.r = sum((R(i) for i in range(0, len(ops))), [])
            else:
                self.w = R(0); self.r = sum((R(i) for i in range(1, len(ops))), [])
                if base == "v_cndmask_b32" and len(ops) == 3: self.r += [("s", "vcc")]
                if self.dpp and ("bound_ctrl" not in mods): self.r += R(0)
            self.trans = base in TRANS
        elif op.startswith("ds_"):
            self.kind = "ds"
            if op.startswith("ds_read") or op.startswith("ds_bpermute") or op.startswith("ds_swizzle") or op.startswith("ds_permute"):
                self.w = R(0); self.r = sum((R(i) for i in range(1, len(ops))), [])
            else:
                self.r = sum((R(i) for i in range(0, len(ops))), [])
        elif op.startswith("buffer_") or op.startswith("global_"):
            self.kind = "vmem"
            islds = " lds" in (" " + mods) or "_lds_" in op
            if op in ("buffer_wbl2", "buffer_inv"):
                pass
            elif "load" in op and not islds:
                self.w = R(0); self.r = sum((R(i) for i in range(1, len(ops))), [])
            elif "load" in op:
                self.r = sum((R(i) for i in range(0, len(ops))), []) + [("s", "m0")]; self.lds = True
            elif "store" in op:
                if op.startswith("buffer_"): self.data = R(0)
                else: self.data = R(1)
                self.r = sum((R(i) for i in range(0, len(ops))), [])
                self.wide = ("x3" in op or "x4" in op)
            elif "atomic" in op:
                self.r = sum((R(i) for i in range(0, len(ops))), [])
                if "sc0" in mods: self.w = R(0)
        elif op.startswith("s_"):
            self.kind = "salu"
            if op.startswith("s_cmp") or op.startswith("s_cbranch") or op in ("s_branch", "s_waitcnt", "s_barrier", "s_endpgm", "s_sleep", "s_setprio"):
                self.r = sum((R(i) for i in range(0, len(ops))), [])
            else:
                self.w = R(0); self.r = sum((R(i) for i in range(1, len(ops))), [])
                if "saveexec" in op: self.w = self.w + [("s", "exec")]
def need(p, c):
    n = 0; pw = set(p.w); cr = set(c.r); cw = set(c.w)
    vg = lambda S: {x for x in S if x[0] in "va"}
    sg = lambda S: {x for x in S if x[0] == "s"}
    if p.kind == "valu":
        if c.kind == "mfma" and vg(pw) & cr: n = max(n, 2)
        if c.kind == "mfma" and ("s", "exec") in pw: n = max(n, 4)
        if c.kind == "valu":
            if vg(pw) & cr:
                if c.dpp: n = max(n, 2)
                if c.base.startswith("v_permlane"): n = max(n, 2)
                if c.base in ("v_readlane_b32", "v_readfirstlane_b32"): n = max(n, 1)
                if getattr(p, "trans", False) and not getattr(c, "trans", False): n = max(n, 1)
            if sg(pw) & cr:
                if c.base in ("v_readlane_b32", "v_writelane_b32"): n = max(n, 4)
                else: n = max(n, 2)
            if ("s", "exec") in pw and c.dpp: n = max(n, 5)
            if ("s", "exec") in pw and c.base in ("v_readlane_b32", "v_readfirstlane_b32", "v_writelane_b32"): n = max(n, 4)
        if c.kind == "vmem" and sg(pw) & cr: n = max(n, 5)
    if p.kind == "mfma":
        P = p.passes
        t = {2: 0, 4: 1, 8: 2, 16: 3}[P]
        if c.kind == "mfma":
            if pw & (set(c.mA) | set(c.mB) | set(getattr(c, "idx", []))): n = max(n, [5, 8, 12, 20][t])
            if pw & set(c.mC):
                if p.w == c.mC and p.passes == c.passes: n = max(n, [2, 0, 0, 0][t])
                else: n = max(n, [4, 6, 10, 18][t])
            elif pw & cw: n = max(n, [4, 6, 10, 18][t])
        elif c.kind in ("valu", "vmem", "ds"):
            if pw & (cr | cw): n = max(n, [5, 8, 12, 20][t])
        if c.kind == "valu" and set(p.mC) & cw: n = max(n, [1, 3, 7, 15][t])
    if p.kind == "vmem" and getattr(p, "wide", False):
        if c.kind == "valu" and set(p.data) & cw: n = max(n, 2)
        elif c.kind in ("ds", "vmem", "mfma") and set(p.data) & cw: n = max(n, 1)
    if p.kind == "salu" and ("s", "m0") in pw and c.kind == "vmem" and getattr(c, "lds", False): n = max(n, 1)
    return n
def check_seq(seq, out, tag=""):
    for i, c in enumerate(seq):
        dist = 0
        for j in range(i - 1, max(-1, i - 24), -1):
            p = seq[j]
            k = need(p, c)
            if k > dist:
                out.add((p.ln, c.ln, k, dist, p.text, c.text, tag))
            dist += p.states
            if dist >= 20: break
def lint(text):
    ins = []; labels = {}
    for ln, line in enumerate(text.split("\n"), 1):
        s = line.split(";")[0].strip()
        if not s or s.startswith("."): continue
        if s.endswith(":"):
            labels[s[:-1]] = len(ins); continue
        ins.append(I(s, ln))
    out = set()
    seq = []
    for x in ins:
        seq.append(x)
        if x.op in ("s_branch", "s_endpgm", "s_setpc_b64"):
            check_seq(seq, out); seq = []
    check_seq(seq, out)
    for p, x in enumerate(ins):
        if x.op.startswith("s_cbranch") or x.op == "s_branch":
            q = labels.get(x.ops[0])
            if q is None: continue
            a = max(0, p - 24)
            pre = ins[a:p + 1]
            for k in range(len(pre) - 2, -1, -1):
                if pre[k].op in ("s_branch", "s_endpgm"): pre = pre[k + 1:]; break
            post = []
            for y in ins[q:q + 24]:
                post.append(y)
                if y.op in ("s_branch", "s_endpgm"): break
            check_seq(pre + post, out, "via branch")
    return sorted(out)
if __name__ == "__main__":
    r = lint(open(sys.argv[1]).read())
    for (a, b, k, d, pt, ct, tag) in r:
        print("line %d -> %d need %d have %d %s\n    %s\n    %s" % (a, b, k, d, tag, pt, ct))
    print("%d hazards" % len(r))

def autofix(text):
    out = []; win = []
    for line in text.split("\n"):
        t = line.split(";")[0].strip()
        if not t or t.startswith(".") or t.endswith(":"):
            out.append(line); continue
        c = I(t, 0)
        dist = 0; deficit = 0
        for p in reversed(win):
            k = need(p, c)
            if k > dist: deficit = max(deficit, k - dist)
            dist += p.states
            if dist >= 20: break
        while deficit > 0:
            k = min(deficit, 16); nl = "    s_nop %d" % (k - 1)
            out.append(nl); win.append(I(nl, 0)); deficit -= k
        out.append(line); win.append(c)
        if len(win) > 48: win = win[-32:]
        if c.op in ("s_branch", "s_endpgm", "s_setpc_b64"): win = []
    text = "\n".join(out)
    for it in range(200):
        r = lint(text)
        if not r: return text
        lines = text.split("\n")
        deficit = {}
        for (a, b, k, d, pt, ct, tag) in r:
            deficit[b] = max(deficit.get(b, 0), k - d)
        done = []
        for b in sorted(deficit):
            if done and b - done[-1] < 30: continue
            done.append(b)
        for b in sorted(done, reverse=True):
            n = deficit[b]; ins = []
            while n > 0:
                k = min(n, 16); ins.append("    s_nop %d" % (k - 1)); n -= k
            lines[b - 1:b - 1] = ins
        text = "\n".join(lines)
    raise RuntimeError("autofix did not converge")
```

```python
import sys
from kcommon import *
import lint, kprep, kproj, ku, kchain, kmain

def main_prologue(a):
    a.ptr(4, L.A_WS)
    a.i("v_and_b32 v1, 63, v0"); a.i("v_lshrrev_b32 v3, 6, v0"); a.i("v_lshlrev_b32 v2, 4, v1")
    a.i("v_readfirstlane_b32 s20, v3")
    a.i("s_mov_b32 s%d, 0x80000", S_BUDGET)
    a.i("s_waitcnt lgkmcnt(0)")
    a.srd_tail(4, L.WS_BYTES)

def test_kv():
    a = K()
    main_prologue(a)
    a.i("s_cmp_ge_u32 s2, 64"); a.i("s_cbranch_scc1 L_exit")
    a.i("s_and_b32 s21, s2, 31")
    a.i("s_cmp_ge_u32 s2, 32"); a.i("s_cbranch_scc1 Lt_v")
    a.ptr(8, L.A_WK); a.i("s_mov_b32 s30, 0x%x", L.KX); a.i("s_mov_b32 s31, %d", L.F_PROGK); a.i("s_branch Lt_go")
    a.label("Lt_v")
    a.ptr(8, L.A_WV); a.i("s_mov_b32 s30, 0x%x", L.VX); a.i("s_mov_b32 s31, %d", L.F_PROGV)
    a.label("Lt_go")
    a.i("s_waitcnt lgkmcnt(0)"); a.srd_tail(8, L.SZ_W)
    kproj.role_kv(a, "L_exit")
    a.label("L_abort"); a.label("L_exit"); a.i("s_endpgm")
    return a.text()

def test_kvu():
    a = K()
    main_prologue(a)
    a.i("s_cmp_ge_u32 s2, 96"); a.i("s_cbranch_scc1 L_exit")
    a.i("s_and_b32 s21, s2, 31")
    a.i("s_cmp_ge_u32 s2, 64"); a.i("s_cbranch_scc1 Lt_u")
    a.i("s_cmp_ge_u32 s2, 32"); a.i("s_cbranch_scc1 Lt_v")
    a.ptr(8, L.A_WK); a.i("s_mov_b32 s30, 0x%x", L.KX); a.i("s_mov_b32 s31, %d", L.F_PROGK); a.i("s_branch Lt_go")
    a.label("Lt_v")
    a.ptr(8, L.A_WV); a.i("s_mov_b32 s30, 0x%x", L.VX); a.i("s_mov_b32 s31, %d", L.F_PROGV)
    a.label("Lt_go")
    a.i("s_waitcnt lgkmcnt(0)"); a.srd_tail(8, L.SZ_W)
    kproj.role_kv(a, "L_exit")
    a.label("Lt_u")
    a.ptr(8, L.A_WO); a.i("s_waitcnt lgkmcnt(0)"); a.srd_tail(8, L.SZ_W)
    ku.role_u(a, "L_exit")
    a.label("L_abort"); a.label("L_exit"); a.i("s_endpgm")
    return a.text()

def test_chain():
    a = K()
    main_prologue(a)
    a.i("s_and_b32 s22, s2, 7"); a.i("s_lshr_b32 s26, s2, 3"); a.i("s_mov_b32 s23, 0")
    a.i("s_cmp_ge_u32 s2, 256"); a.i("s_cbranch_scc1 L_exit")
    a.i("s_cmp_ge_u32 s22, 4"); a.i("s_cbranch_scc1 L_exit")
    a.i("s_cmp_ge_u32 s26, 28"); a.i("s_cbranch_scc1 L_exit")
    a.i("s_cmp_ge_u32 s26, 8"); a.i("s_cbranch_scc1 Lt_b")
    a.i("s_lshl_b32 s21, s22, 3"); a.i("s_add_u32 s21, s21, s26")
    a.ptr(8, L.A_WQ); a.ptr(12, L.A_WK); a.i("s_waitcnt lgkmcnt(0)"); a.srd_tail(8, L.SZ_W); a.srd_tail(12, L.SZ_W)
    kchain.role_qk(a)
    a.label("Lt_b")
    a.i("s_sub_u32 s21, s26, 8")
    kchain.role_b(a)
    a.label("L_abort"); a.label("L_exit"); a.i("s_endpgm")
    return a.text()

HEADER = """Recurrent-memory transformer block + SwiGLU FFN for gfx950, generated by the author's own scripts (gen/*.py).
Kernarg: x, mem0, Wq, Wk, Wv, Wo, seg_len, B_x, w_gate, w_up, w_down, out, debug, ws (8 bytes each).
Launch 1 (prep): LayerNorm(x) in MFMA operand order, Wv_h*Wo_h, initialisation of the hand-off buffers.
Launch 2 (main): one workgroup per CU with fixed roles: the memory recurrence (weights held in registers),
weight-stationary projections, token attention, attention output and the FFN, chained through flags in ws.""".split("\n")
def write_module(fn, launches, kernels):
    hdr = HEADER + ["@launch kernel=%s grid=(%d,1,1) block=(%d,1,1) lds=%d" % l for l in launches]
    ks = [(n, lint.autofix(t), v, s, acc) for (n, t, v, s, acc) in kernels]
    txt = module(hdr, ks)
    open(fn, "w").write(txt)
    print(fn, len(txt), "bytes", txt.count("\n"), "lines", txt.count("s_nop"), "nops")

if __name__ == "__main__":
    which = sys.argv[1]
    import kcommon
    kcommon.PROFILE = "prof" in sys.argv
    if which == "kv":
        write_module("test_kv.s", [("prep_kernel", 256, 256, 110592), ("kv_kernel", 64, 256, 163840)],
                     [("prep_kernel", kprep.gen_prep(), 384, 64, 256), ("kv_kernel", test_kv(), 512, 102, 256)])
    if which == "kvu":
        ku.EXP = sys.argv[-1]
        write_module("test_kvu_%s.s" % sys.argv[-1], [("prep_kernel", 256, 256, 110592), ("kvu_kernel", 96, 256, 163840)],
                     [("prep_kernel", kprep.gen_prep(), 384, 64, 256), ("kvu_kernel", test_kvu(), 512, 102, 256)])
    if which == "chain":
        write_module("test_chain.s", [("prep_kernel", 256, 256, 110592), ("kvu_kernel", 96, 256, 163840), ("chain_kernel", 256, 256, 163840)],
                     [("prep_kernel", kprep.gen_prep(), 384, 64, 256), ("kvu_kernel", test_kvu(), 512, 102, 256), ("chain_kernel", test_chain().replace("L_exit", "Lc_exit").replace("L_abort", "Lc_abort"), 512, 102, 256)])
    if which == "full":
        name = "sequential_preLN__memory_aug_recurrent_mem_tr__swiglu_ffn__prompt"
        fn = sys.argv[2]
        write_module(fn, [("prep_kernel", 256, 256, 110592), (name + "_kernel", 256, 256, 163840)],
                     [("prep_kernel", kprep.gen_prep(), 384, 64, 256), (name + "_kernel", kmain.gen_main(), 512, 102, 256)])
```
